```python
import torch

def _softmax(x, axis=-1):
    return torch.softmax(x, dim=axis)
def _gelu(x):
    return torch.nn.functional.gelu(x, approximate="tanh")
def _silu(x):
    return torch.nn.functional.silu(x)
def _sigmoid(x):
    return torch.sigmoid(x)
def _layernorm(x, axis=-1, eps=1e-5):
    m = x.mean(dim=axis, keepdim=True)
    v = x.var(dim=axis, keepdim=True, unbiased=False)
    return (x - m) / torch.sqrt(v + eps)
def _scatter_add(tgt, idx, src, axis=0):
    return tgt.clone().index_add_(axis, idx, src)
def _segment_sum(src, seg, n):
    out = torch.zeros((n,) + src.shape[1:], dtype=src.dtype)
    return out.index_add_(0, seg, src)
def _pad(x, pw):
    flat = tuple(v for pair in reversed(pw) for v in pair)
    return torch.nn.functional.pad(x, flat)

kernel_name = 'standalone__mpnn_edge_mlp__graph'

def setup_inputs():

    _w = (lambda a: (lambda t: t.to(torch.bfloat16) if t.is_floating_point() else t)(torch.as_tensor(a)))
    N, deg, D, De = 12500, 64, 64, max(4, 1)
    E = N * deg
    return {
        "x": _w((lambda *s: torch.randn(*s, dtype=torch.bfloat16) * 0.05)(N, D)),
        "e_attr": _w((lambda *s: torch.randn(*s, dtype=torch.bfloat16) * 0.4)(E, De)),
        "src": _w((lambda lo, hi, *s: torch.randint(lo, hi, s))(0, N, E).to(torch.int64)),
        "dst": _w((lambda lo, hi, *s: torch.randint(lo, hi, s))(0, N, E).to(torch.int64)),
        "w_msg": _w((lambda *s: torch.randn(*s, dtype=torch.bfloat16) * 0.4)(2 * D + De, D)),
        "w_upd": _w((lambda *s: torch.randn(*s, dtype=torch.bfloat16) * 0.05)(2 * D, D)),
    }

def reference(x, e_attr, src, dst, w_msg, w_upd):
    N, D = x.shape
    m_in = torch.concatenate([x[src], x[dst], e_attr], axis=-1)
    msg = _silu(m_in @ w_msg)
    agg = _segment_sum(msg, dst, N)
    return _silu(torch.concatenate([x, agg], axis=-1) @ w_upd)
```

```python
class Asm:
    def __init__(self):
        self.lines = []
    def __call__(self, s=""):
        for ln in s.split("\n"):
            ln = ln.strip()
            if not ln:
                continue
            if ln.endswith(":") or ln.startswith("."):
                self.lines.append(ln)
            else:
                self.lines.append("    " + ln)
    def text(self):
        return "\n".join(self.lines) + "\n"

def vr(a, n=1):
    return f"v{a}" if n == 1 else f"v[{a}:{a+n-1}]"

def sr(a, n=1):
    return f"s{a}" if n == 1 else f"s[{a}:{a+n-1}]"

def f32bits(x):
    import struct
    return struct.unpack("<I", struct.pack("<f", x))[0]

def kd(name, nv, ns):
    return f""".amdhsa_kernel {name}
  .amdhsa_next_free_vgpr {nv}
  .amdhsa_next_free_sgpr {ns}
  .amdhsa_accum_offset {(nv + 3) // 4 * 4}
  .amdhsa_group_segment_fixed_size 0
  .amdhsa_kernarg_size 72
  .amdhsa_user_sgpr_count 2
  .amdhsa_user_sgpr_kernarg_segment_ptr 1
  .amdhsa_system_sgpr_workgroup_id_x 1
.end_amdhsa_kernel
"""

def wave_scan(a, v):
    for sh in (1, 2, 4, 8):
        a("s_nop 1")
        a(f"v_add_u32_dpp v{v}, v{v}, v{v} row_shr:{sh} row_mask:0xf bank_mask:0xf")
    a("s_nop 1")
    a(f"v_add_u32_dpp v{v}, v{v}, v{v} row_bcast:15 row_mask:0xa bank_mask:0xf")
    a("s_nop 1")
    a(f"v_add_u32_dpp v{v}, v{v}, v{v} row_bcast:31 row_mask:0xc bank_mask:0xf")

def srd(a, d, base, off=None, size=None, stride=0):
    if off is None:
        a(f"s_mov_b32 s{d}, s{base}")
        a(f"s_mov_b32 s{d+1}, s{base+1}")
    else:
        a(f"s_add_u32 s{d}, s{base}, {off}")
        a(f"s_addc_u32 s{d+1}, s{base+1}, 0")
    if stride:
        a(f"s_or_b32 s{d+1}, s{d+1}, {stride << 16:#x}")
    a(f"s_mov_b32 s{d+2}, {size}")
    a(f"s_mov_b32 s{d+3}, 0x00020000")
```

```python
from asmlib import *
from common import *

def wtr_addr(a, vd, vlane, t0, t1):
    a(f"v_lshrrev_b32 v{t0}, 4, v{vlane}")
    a(f"v_bfe_u32 v{t1}, v{vlane}, 2, 2")
    a(f"v_lshl_add_u32 v{t0}, v{t0}, 3, v{t1}")
    a(f"v_and_b32 v{t1}, 3, v{vlane}")
    a(f"v_lshlrev_b32 v{t1}, 4, v{t1}")
    a(f"v_lshl_add_u32 v{vd}, v{t0}, 7, v{t1}")

def wtr_reads(a, wr, va, off):
    for ot in range(4):
        for ks in range(2):
            for u in range(2):
                d = wr + (ot * 2 + ks) * 4 + 2 * u
                o = off + ks * 4096 + u * 512 + (ot >> 1) * 64 + (ot & 1) * 8
                a(f"ds_read_b64_tr_b16 {vr(d,2)}, v{va} offset:{o}")

def small_mfma(a, out, wr, xb, cinit=None):
    for ks in range(2):
        for ot in range(4):
            c = vr(out + 4 * ot, 4) if (ks or cinit) else "0"
            a(f"v_mfma_f32_16x16x32_bf16 {vr(out+4*ot,4)}, {vr(wr+(ot*2+ks)*4,4)}, {vr(xb+4*ks,4)}, {c}")

K1_HIST, K1_BASE, K1_W0S, K1_WIMG, K1_EIN = 0, 1024, 2048, 18432, 26624
K1_LDS = K1_EIN + 32768

def gen_k1(name, opt):
    a = Asm()
    sD, sS, sE, sX, sW, sOW, sOE, sT, sP = 16, 20, 24, 28, 32, 36, 40, 44, 48
    sNV, sWV, mA, mB = 52, 53, 54, 56
    sT0, sT1, sM49 = 58, 59, 60
    vL, vO16, vFour, vTE = 1, 2, 3, 4
    vD, vS, vB4, vRK, vLOC = 8, 16, 24, 32, 40
    vH, vBS, vSC = 48, 52, 56
    vXB, vWA, vT0, vT1, vT2 = 60, 68, 69, 70, 71
    vWR, vOUT = 72, 104
    a(f".p2align 8\n.globl {name}\n.type {name},@function\n{name}:")
    a("s_cmp_ge_u32 s2, 256\ns_cbranch_scc1 K1_END")
    a("s_load_dwordx8 s[4:11], s[0:1], 0\ns_load_dwordx2 s[12:13], s[0:1], 32\ns_load_dwordx2 s[14:15], s[0:1], 64")
    if opt.get("stamp"):
        a("s_memrealtime s[70:71]")
    a(f"v_lshrrev_b32 v{vT0}, 6, v0\nv_and_b32 v{vL}, 63, v0\nv_lshlrev_b32 v{vO16}, 4, v0")
    a(f"v_readfirstlane_b32 s{sWV}, v{vT0}")
    a(f"s_mul_i32 s{sT0}, s2, {CH}\ns_min_u32 s{sT0}, s{sT0}, {E}")
    a(f"s_sub_u32 s{sNV}, {E}, s{sT0}\ns_min_u32 s{sNV}, s{sNV}, {CH}")
    a(f"s_lshl_b32 s{sT0}, s{sT0}, 2\ns_lshl_b32 s{sT1}, s{sNV}, 2")
    a(f"s_mov_b32 s61, 8192")
    a("s_waitcnt lgkmcnt(0)")
    srd(a, sD, 10, f"s{sT0}", f"s{sT1}")
    a(f"buffer_load_dwordx4 {vr(vD,4)}, v{vO16}, {sr(sD,4)}, 0 offen")
    a(f"buffer_load_dwordx4 {vr(vD+4,4)}, v{vO16}, {sr(sD,4)}, s61 offen")
    srd(a, sS, 8, f"s{sT0}", f"s{sT1}")
    a(f"buffer_load_dwordx4 {vr(vS,4)}, v{vO16}, {sr(sS,4)}, 0 offen")
    a(f"buffer_load_dwordx4 {vr(vS+4,4)}, v{vO16}, {sr(sS,4)}, s61 offen")
    a(f"s_mul_i32 s62, s2, {CSTR*4}")
    a(f"s_add_u32 s63, s62, {WS_W0}")
    srd(a, sOW, 14, "s63", f"s{sT1}")
    a(f"s_lshl_b32 s{sT0}, s{sT0}, 1\ns_lshl_b32 s{sT1}, s{sT1}, 1")
    srd(a, sE, 6, f"s{sT0}", f"s{sT1}")
    a(f"s_lshl_b32 s62, s62, 1\ns_add_u32 s62, s62, {WS_EA}")
    srd(a, sOE, 14, "s62", f"s{sT1}")
    srd(a, sW, 12, None, 8192)
    a(f"s_mul_i32 s62, s2, {NPB*128}\ns_sub_u32 s63, {N*128}, s62")
    srd(a, sX, 4, "s62", "s63")
    a(f"s_add_u32 s62, s62, {WS_P}")
    srd(a, sP, 14, "s62", NPB * 128)
    a(f"s_lshl_b32 s62, s2, 2\ns_add_u32 s62, s62, {WS_TBL}")
    srd(a, sT, 14, "s62", 256 * 1024)
    a(f"v_and_b32 v{vT0}, 15, v{vL}\nv_lshrrev_b32 v{vT1}, 4, v{vL}\nv_lshlrev_b32 v{vT1}, 4, v{vT1}")
    a(f"v_lshl_add_u32 v{vT2}, v{vT0}, 7, v{vT1}")
    a(f"s_and_b32 s62, s{sWV}, 3\ns_lshl_b32 s64, s62, 11")
    a(f"s_lshl_b32 s65, s{sWV}, 10")
    a(f"s_cmp_ge_u32 s{sWV}, 4\ns_cbranch_scc1 K1_LDX")
    a(f"s_add_u32 m0, s65, {K1_WIMG}\ns_mov_b32 s63, 4096")
    a(f"buffer_load_dwordx4 v{vO16}, {sr(sW,4)}, 0 offen lds")
    a(f"s_add_u32 m0, s65, {K1_WIMG+4096}\ns_nop 0")
    a(f"buffer_load_dwordx4 v{vO16}, {sr(sW,4)}, s63 offen lds")
    a("s_branch K1_LDE\nK1_LDX:")
    a(f"buffer_load_dwordx4 {vr(vXB,4)}, v{vT2}, {sr(sX,4)}, s64 offen")
    a(f"buffer_load_dwordx4 {vr(vXB+4,4)}, v{vT2}, {sr(sX,4)}, s64 offen offset:64")
    a("K1_LDE:")
    for k in range(4):
        a(f"s_add_u32 m0, s65, {K1_EIN + 8192*k}\ns_mov_b32 s63, {8192*k}")
        a(f"buffer_load_dwordx4 v{vO16}, {sr(sE,4)}, s63 offen lds")
    a(f"v_lshlrev_b32 v{vT0}, 2, v0\nv_mov_b32 v{vT1}, 0\nds_write_b32 v{vT0}, v{vT1} offset:{K1_HIST}")
    a(f"v_mov_b32 v{vFour}, 4\nv_lshlrev_b32 v{vTE}, 22, v0\ns_movk_i32 s{sM49}, -49")
    a(f"s_lshr_b32 s62, s{sNV}, 2\nv_cmp_gt_u32 {sr(mA,2)}, s62, v0")
    a(f"v_add_u32 v{vT0}, 512, v0\nv_cmp_gt_u32 {sr(mB,2)}, s62, v{vT0}")
    wtr_addr(a, vWA, vL, vT0, vT1)
    a("s_waitcnt lgkmcnt(0)\ns_barrier")
    a("s_waitcnt vmcnt(8)")
    if opt.get("stamp"):
        a("s_memrealtime s[72:73]\ns_waitcnt lgkmcnt(0)")
    for half, m in ((0, mA), (1, mB)):
        a(f"s_mov_b64 exec, {sr(m,2)}")
        if half:
            a("s_cbranch_execz K1_H1")
        for r in range(4 * half, 4 * half + 4):
            a(f"v_mul_u32_u24 v{vB4+r}, {MAGIC49}, v{vD+r}")
            a(f"v_lshrrev_b32 v{vB4+r}, {SH49}, v{vB4+r}")
            a(f"v_mad_i32_i24 v{vLOC+r}, v{vB4+r}, s{sM49}, v{vD+r}")
            a(f"v_lshlrev_b32 v{vB4+r}, 2, v{vB4+r}")
            a(f"ds_add_rtn_u32 v{vRK+r}, v{vB4+r}, v{vFour} offset:{K1_HIST}")
    a("K1_H1:\ns_mov_b64 exec, -1")
    a("s_waitcnt lgkmcnt(0)\ns_barrier")
    a(f"v_lshlrev_b32 v{vT0}, 4, v{vL}\nds_read_b128 {vr(vH,4)}, v{vT0} offset:{K1_HIST}\ns_waitcnt lgkmcnt(0)")
    a(f"v_add_u32 v{vBS+1}, v{vH}, v{vH+1}\nv_add3_u32 v{vSC}, v{vBS+1}, v{vH+2}, v{vH+3}\nv_mov_b32 v{vT1}, v{vSC}")
    wave_scan(a, vSC)
    a(f"v_sub_u32 v{vBS}, v{vSC}, v{vT1}\nv_add_u32 v{vBS+2}, v{vBS}, v{vBS+1}\nv_add_u32 v{vBS+1}, v{vBS}, v{vH}")
    a(f"v_add_u32 v{vBS+3}, v{vBS+2}, v{vH+2}")
    a(f"ds_write_b128 v{vT0}, {vr(vBS,4)} offset:{K1_BASE}")
    for half, m in ((0, mA), (1, mB)):
        a(f"s_mov_b64 exec, {sr(m,2)}")
        for r in range(4 * half, 4 * half + 4):
            a(f"ds_read_b32 v{vB4+r}, v{vB4+r} offset:{K1_BASE}")
    a(f"s_lshl_b32 s62, s{sWV}, 3\ns_lshl_b64 exec, 0xff, s62")
    a(f"v_lshlrev_b32 v{vT1}, 12, v{vL}")
    for i in range(4):
        a(f"v_lshl_or_b32 v{vH+i}, v{vH+i}, 16, v{vBS+i}")
        a(f"buffer_store_dword v{vH+i}, v{vT1}, {sr(sT,4)}, 0 offen offset:{1024*i}")
    a("s_waitcnt vmcnt(10) lgkmcnt(0)")
    for half, m in ((0, mA), (1, mB)):
        a(f"s_mov_b64 exec, {sr(m,2)}")
        if half:
            a("s_cbranch_execz K1_H2")
        for r in range(4 * half, 4 * half + 4):
            a(f"s_mov_b32 s62, {((r & 3) << 20) | (half << 31):#x}")
            a(f"v_lshl_or_b32 v{vS+r}, v{vLOC+r}, 14, v{vS+r}")
            a(f"v_add_u32 v{vRK+r}, v{vRK+r}, v{vB4+r}")
            a(f"v_or3_b32 v{vS+r}, v{vS+r}, v{vTE}, s62")
            a(f"ds_write_b32 v{vRK+r}, v{vS+r} offset:{K1_W0S}")
    a("K1_H2:\ns_mov_b64 exec, -1")
    a("s_waitcnt vmcnt(8) lgkmcnt(0)\ns_barrier")
    if opt.get("stamp"):
        a("s_memrealtime s[74:75]\ns_waitcnt lgkmcnt(0)")
    vQ, vPR, vEA = vD, vB4, vRK
    a(f"ds_read_b128 {vr(vQ,4)}, v{vO16} offset:{K1_W0S}\nds_read_b128 {vr(vQ+4,4)}, v{vO16} offset:{K1_W0S+8192}")
    a(f"v_lshlrev_b32 v{vT0}, 3, v0")
    for i in range(4):
        a(f"ds_read_b64 {vr(vPR+2*i,2)}, v{vT0} offset:{K1_W0S+4096*i}")
    a("s_waitcnt lgkmcnt(4)")
    a(f"buffer_store_dwordx4 {vr(vQ,4)}, v{vO16}, {sr(sOW,4)}, 0 offen")
    a(f"buffer_store_dwordx4 {vr(vQ+4,4)}, v{vO16}, {sr(sOW,4)}, s61 offen")
    a("s_waitcnt lgkmcnt(0)")
    for i in range(8):
        a(f"v_lshrrev_b32 v{vEA+i}, 17, v{vPR+i}\nv_and_b32 v{vEA+i}, 0x7ff8, v{vEA+i}")
    a(f"s_cmp_ge_u32 s{sWV}, 4\ns_cbranch_scc1 K1_PG")
    a("s_waitcnt vmcnt(6)\ns_branch K1_EO\nK1_PG:")
    wtr_reads(a, vWR, vWA, K1_WIMG)
    a("s_waitcnt lgkmcnt(0)")
    small_mfma(a, vOUT, vWR, vXB)
    a("s_nop 7")
    for i in range(16):
        a(f"v_mul_f32 v{vOUT+i}, {f32bits(-LOG2E):#x}, v{vOUT+i}")
    for i in range(8):
        a(f"v_cvt_pk_bf16_f32 v{vWR+i}, v{vOUT+2*i}, v{vOUT+2*i+1}")
    a(f"buffer_store_dwordx4 {vr(vWR,4)}, v{vT2}, {sr(sP,4)}, s64 offen")
    a(f"buffer_store_dwordx4 {vr(vWR+4,4)}, v{vT2}, {sr(sP,4)}, s64 offen offset:64")
    a("s_waitcnt vmcnt(8)\nK1_EO:")
    a("s_barrier")
    if opt.get("stamp"):
        a("s_memrealtime s[76:77]\ns_waitcnt lgkmcnt(0)")
    vG = 88
    for i in range(6):
        a(f"ds_read_b64 {vr(vG+2*i,2)}, v{vEA+i} offset:{K1_EIN}")
    for i in range(3):
        a(f"s_mov_b32 s63, {8192*i}\ns_waitcnt lgkmcnt({4-2*i})")
        a(f"buffer_store_dwordx4 {vr(vG+4*i,4)}, v{vO16}, {sr(sOE,4)}, s63 offen")
    a(f"s_cmp_lg_u32 s{sWV}, 0\ns_cbranch_scc1 K1_END")
    for i in range(6, 8):
        a(f"ds_read_b64 {vr(vG+2*i,2)}, v{vEA+i} offset:{K1_EIN}")
    a(f"s_mov_b32 s63, {8192*3}\ns_waitcnt lgkmcnt(0)")
    a(f"buffer_store_dwordx4 {vr(vG+12,4)}, v{vO16}, {sr(sOE,4)}, s63 offen")
    if opt.get("stamp"):
        a("s_memrealtime s[78:79]\ns_waitcnt vmcnt(0)\ns_memrealtime s[80:81]\ns_waitcnt lgkmcnt(0)")
        a(f"s_lshl_b32 s62, s2, 6\ns_add_u32 s62, s62, {WS_DBG}")
        srd(a, 84, 14, "s62", 64)
        a("v_mov_b32 v1, 0")
        for i in range(6):
            a(f"v_mov_b32 v2, s{70+2*i}\nbuffer_store_dword v2, v1, s[84:87], 0 offen offset:{4*i}")
    a("K1_END:\ns_endpgm")
    return a.text(), kd(name, 120, 96)
```

```python
from asmlib import *
from common import *
from k1 import wtr_addr, wtr_reads, small_mfma

L = 15
CAPB = 448
CNT, PTAB, LUT, LIST, EAI = 0, 256, 1280, 2576, 24576
STG = EAI + 65536
BUF1 = 32768
W5I = STG + 65536
K2_LDS = W5I + 8192
W2I, W3I, W4I = STG, STG + 8192, STG + 12288
QB, QSTR = STG + BUF1, 272
FLG_MORE, FLG_NUM = 4 * 62, 4 * 63

vL = 1
vN, vY, vD, vE = 4, 38, 73, 107
vQ, vX, vSEL, vW3, vEV, vIDX, vPA, vXA, vU, vS = 124, 156, 172, 180, 184, 188, 196, 200, 204, 220
vPO, vEAD, vPW, vTR, vWA, vOA, vPBE, vLEN, vCHK = 236, 237, 238, 242, 246, 247, 248, 249, 250
vT0, vT1, vT2, vT3, vT4 = 251, 252, 253, 254, 255
sT, sW0, sEA, sP, sO, sX, sWM, sWU = 16, 20, 24, 28, 32, 36, 40, 44
sMK = 48
sWV, sRND, sG0, sGG, sSAFE, sFIRST, sSTG, sKB, sNP, sVAL = 80, 81, 82, 83, 84, 85, 86, 87, 88, 90
sA, sB, sC = 92, 93, 94

def mask(t):
    return "-1" if t == 0 else sr(sMK + 2 * t, 2)

def mfma_group(tau, m):
    d = (vN if tau == 0 else vY) + 16 * m
    return [f"v_mfma_f32_32x32x8_bf16 {vr(d,16)}, {vr(vW3+2*m,2)}, {vr(vEV+2*(tau&1),2)}, {vr(vQ+16*m,16)}",
            f"v_mfma_f32_32x32x16_bf16 {vr(d,16)}, {vr(vSEL,4)}, {vr(vX+8*m,4)}, {vr(d,16)}",
            f"v_mfma_f32_32x32x16_bf16 {vr(d,16)}, {vr(vSEL+4,4)}, {vr(vX+8*m+4,4)}, {vr(d,16)}"]

def dma(a, tau):
    a(f"s_add_u32 m0, s{sSTG}, {BUF1*(tau&1)}")
    a("s_nop 0")
    for j in range(4):
        a(f"buffer_load_dwordx4 {vr(vIDX+2*j,2)}, {sr(sP,4)}, 0 idxen offen offset:{1024*j} lds")

def idx_reads(a, tau):
    for j in range(4):
        a(f"ds_read_u16 v{vIDX+2*j}, v{vPA+j} offset:{4*tau}")

def x_reads(a, tau, m):
    for s in range(2):
        a(f"ds_read_b128 {vr(vX+8*m+4*s,4)}, v{vXA+2*m+s} offset:{BUF1*(tau&1)}")

def block(a, tau, m, endmask):
    a("s_mov_b64 exec, -1")
    if m == 0:
        a("s_waitcnt vmcnt(0) lgkmcnt(0)")
        if tau + 1 < L:
            if tau + 2 < L:
                a(f"s_add_u32 m0, s{sSTG}, {BUF1*(tau&1)}")
            x_reads(a, tau + 1, 0)
            a(f"ds_read_b64 {vr(vEV+2*((tau+1)&1),2)}, v{vEAD} offset:{EAI}")
        if tau + 2 < L:
            for j in range(4):
                a(f"buffer_load_dwordx4 {vr(vIDX+2*j,2)}, {sr(sP,4)}, 0 idxen offen offset:{1024*j} lds")
    else:
        if tau + 1 < L:
            a("s_waitcnt lgkmcnt(0)")
            x_reads(a, tau + 1, 1)
        if tau + 3 < L:
            idx_reads(a, tau + 3)
        if tau + 2 < L:
            a(f"ds_read_u16 v{vEAD}, v{vPO} offset:{4*(tau+2)+2}")
    if endmask != "-1":
        a(f"s_mov_b64 exec, {endmask}")

def trans(a, tau, m, prio, extra=()):
    src = (vN if tau == 0 else vY) + 16 * m
    dst = vD + 16 * m if tau == 0 else vE
    nxt = (tau, 1) if m == 0 else (tau + 1, 0)
    mf = mfma_group(*nxt) if nxt[0] < L else []
    a(f"s_setprio {prio}")
    for e in extra:
        a(e)
    for i in range(16):
        if i in (2, 6, 10) and mf:
            a(mf.pop(0))
        a(f"v_exp_f32 v{dst+i}, v{src+i}")
    a("s_setprio 0")

def dual(a, tau, m):
    n, d, y = vN + 16 * m, vD + 16 * m, vY + 16 * m
    if tau == 0:
        for i in range(16):
            a(f"v_add_f32 v{d+i}, 1.0, v{d+i}")
        return
    for i in range(16):
        a(f"v_fmac_f32 v{n+i}, v{n+i}, v{vE+i}")
    for i in range(16):
        a(f"v_fmac_f32 v{n+i}, v{y+i}, v{d+i}")
    for i in range(16):
        a(f"v_fmac_f32 v{d+i}, v{d+i}, v{vE+i}")

def flush_pre(a, m):
    n, d, p = vN + 16 * m, vD + 16 * m, vY + 16 * m
    for i in range(8):
        a(f"v_mul_f32 v{p+i}, v{d+2*i}, v{d+2*i+1}")
    for i in range(8):
        a(f"v_mul_f32 v{n+2*i}, v{n+2*i}, v{d+2*i+1}")
        a(f"v_mul_f32 v{n+2*i+1}, v{n+2*i+1}, v{d+2*i}")
    for i in range(8):
        a(f"v_add_f32 v{vCHK}, v{vCHK}, v{p+i}")

def flush_rcp(m):
    p = vY + 16 * m
    return [f"v_rcp_f32 v{p+i}, v{p+i}" for i in range(8)]

def flush_mul(a, m):
    n, p = vN + 16 * m, vY + 16 * m
    for i in range(16):
        a(f"v_mul_f32 v{n+i}, v{n+i}, v{p+(i>>1)}")

def flush_out(a, m):
    n, o = vN + 16 * m, vY + 16 * m + 8
    for u in range(2):
        for i in range(4):
            a(f"v_cvt_pk_bf16_f32 v{o+4*u+i}, v{n+8*u+2*i}, v{n+8*u+2*i+1}")
        a(f"ds_write_b128 v{vPW+2*m+u}, {vr(o+4*u,4)}")

def main_loop(a, role):
    prio = 2 if role == "A" else 1
    halves = [(t, m) for t in range(L) for m in range(2)]
    if role == "A":
        block(a, 0, 0, "-1")
    for k, (t, m) in enumerate(halves):
        last = k == len(halves) - 1
        if role == "B":
            block(a, t, m, "-1" if last else mask(t))
        trans(a, t, m, prio, flush_rcp(0) if last else ())
        if role == "A":
            if not last:
                block(a, *halves[k + 1], mask(t))
            else:
                wtr_reads(a, vQ, vWA, 0)
        if last:
            flush_mul(a, 0)
            a(f"s_mov_b64 exec, {mask(t)}")
        dual(a, t, m)
        if t == L - 1:
            a("s_mov_b64 exec, -1")
            flush_pre(a, m)
    a(f"s_setprio {prio}")
    for e in flush_rcp(1):
        a(e)
    flush_out(a, 0)
    a("s_setprio 0")
    flush_mul(a, 1)
    flush_out(a, 1)

def safe_loop(a):
    a("s_waitcnt vmcnt(0) lgkmcnt(0)")
    for i in range(32):
        a(f"v_mov_b32 v{vN+i}, 0")
    a(f"s_mov_b32 s{sA}, 0\nK2_SAFE_L:")
    idx_reads(a, 0)
    a(f"ds_read_u16 v{vEAD}, v{vPO} offset:2\ns_waitcnt lgkmcnt(0)")
    dma(a, 1)
    a(f"ds_read_b64 {vr(vEV+2,2)}, v{vEAD} offset:{EAI}\ns_waitcnt vmcnt(0)")
    x_reads(a, 1, 0)
    x_reads(a, 1, 1)
    a("s_waitcnt lgkmcnt(0)")
    for m in range(2):
        for e in mfma_group(1, m):
            a(e)
    for j in range(4):
        a(f"v_add_u32 v{vPA+j}, 4, v{vPA+j}")
    a(f"v_add_u32 v{vPO}, 4, v{vPO}\nv_cmp_lt_u32 vcc, s{sA}, v{vLEN}\ns_nop 15\ns_mov_b64 exec, vcc")
    for i in range(32):
        a(f"v_exp_f32 v{vD+i}, v{vY+i}")
    for i in range(32):
        a(f"v_add_f32 v{vD+i}, 1.0, v{vD+i}")
    for i in range(32):
        a(f"v_rcp_f32 v{vD+i}, v{vD+i}")
    for i in range(32):
        a(f"v_fmac_f32 v{vN+i}, v{vY+i}, v{vD+i}")
    a(f"s_mov_b64 exec, -1\ns_add_u32 s{sA}, s{sA}, 1\ns_cmp_lt_u32 s{sA}, {L}\ns_cbranch_scc1 K2_SAFE_L")
    wtr_reads(a, vQ, vWA, 0)
    flush_out(a, 0)
    flush_out(a, 1)

def s_lut_reads(a):
    a(f"v_lshrrev_b32 v{vT0}, 4, v{vL}\nv_lshlrev_b32 v{vT0}, 3, v{vT0}\ns_lshl_b32 s{sA}, s{sKB}, 5")
    a(f"v_add_u32 v{vT0}, s{sA}, v{vT0}")
    a(f"v_and_b32 v{vT1}, 0xffff, v{vPBE}\nv_lshrrev_b32 v{vT2}, 16, v{vPBE}")
    a(f"v_sub_u32 v{vT1}, v{vT1}, v{vT0}\nv_sub_u32 v{vT2}, v{vT2}, v{vT0}")
    for k in range(4):
        a(f"v_med3_i32 v{vT3}, v{vT1}, 0, 8\nv_med3_i32 v{vT4}, v{vT2}, 0, 8")
        a(f"v_mad_u32_u24 v{vT3}, v{vT3}, 9, v{vT4}\nv_lshlrev_b32 v{vT3}, 4, v{vT3}")
        a(f"ds_read_b128 {vr(vS+4*k,4)}, v{vT3} offset:{LUT}")
        if k < 3:
            a(f"v_subrev_u32 v{vT1}, 32, v{vT1}\nv_subrev_u32 v{vT2}, 32, v{vT2}")

def gen_k2(name, opt):
    a = Asm()
    nst = [0]
    def stamp():
        if opt.get("stamp"):
            a(f"s_memrealtime s[96:97]\ns_waitcnt lgkmcnt(0)\nv_writelane_b32 v3, s96, {nst[0]}")
            nst[0] += 1
    vTB, vXB, vO16 = 8, 12, 2
    vW, vCA, vPOS, vAW, vAE, vC = 20, 40, 56, 76, 80, 84
    vWR, vOUT = vQ, vX
    a(f".p2align 8\n.globl {name}\n.type {name},@function\n{name}:")
    a("s_cmp_ge_u32 s2, 256\ns_cbranch_scc1 K2_END")
    a("s_load_dwordx2 s[14:15], s[0:1], 64\ns_load_dwordx2 s[4:5], s[0:1], 0\ns_load_dwordx4 s[8:11], s[0:1], 32\ns_load_dwordx2 s[12:13], s[0:1], 48")
    a(f"v_lshrrev_b32 v{vT0}, 6, v0\nv_and_b32 v{vL}, 63, v0\nv_lshlrev_b32 v{vO16}, 4, v0")
    a(f"v_readfirstlane_b32 s{sWV}, v{vT0}")
    a(f"s_mov_b32 s{sRND}, 0\ns_mov_b32 s{sG0}, 0\ns_mov_b32 s{sGG}, 256\ns_mov_b32 s{sSAFE}, {1 if opt.get('force_safe') else 0}\ns_mov_b32 s{sFIRST}, 1")
    if opt.get("force_gg"):
        a(f"s_mov_b32 s{sGG}, {opt['force_gg']}")
    a(f"s_lshl_b32 s{sA}, s2, 10\ns_add_u32 s{sA}, s{sA}, {WS_TBL}")
    a(f"v_lshrrev_b32 v{vT1}, 3, v0\nv_lshlrev_b32 v{vT1}, 4, v{vT1}")
    if opt.get("stamp"):
        a("v_mov_b32 v3, 0")
    stamp()
    a("s_waitcnt lgkmcnt(0)")
    srd(a, sT, 14, f"s{sA}", 1024)
    a("K2_ROUND:")
    a(f"buffer_load_dwordx4 {vr(vTB,4)}, v{vT1}, {sr(sT,4)}, 0 offen")
    srd(a, sWM, 8, 8192, 8704)
    srd(a, sWU, 10, None, 16384)
    a(f"s_lshl_b32 s{sB}, s{sWV}, 10\ns_mov_b32 s{sC}, 8192")
    a(f"s_add_u32 m0, s{sB}, {W2I}\nv_lshlrev_b32 v{vT0}, 2, v0")
    a(f"buffer_load_dwordx4 v{vO16}, {sr(sWM,4)}, 0 offen lds")
    a(f"s_add_u32 m0, s{sB}, {W4I}\ns_lshl_b32 s{sA}, s{sWV}, 8")
    a(f"buffer_load_dwordx4 v{vO16}, {sr(sWU,4)}, 0 offen lds")
    a(f"s_add_u32 m0, s{sA}, {W3I}\ns_nop 0")
    a(f"buffer_load_dword v{vT0}, {sr(sWM,4)}, s{sC} offen lds")
    a(f"s_add_u32 m0, s{sB}, {W5I}\ns_nop 0")
    a(f"buffer_load_dwordx4 v{vO16}, {sr(sWU,4)}, s{sC} offen lds")
    a(f"s_mul_i32 s{sA}, s2, {NPB*128}\ns_sub_u32 s{sB}, {N*128}, s{sA}")
    srd(a, sX, 4, f"s{sA}", f"s{sB}")
    a(f"s_min_u32 s{sB}, s{sB}, {NPB*128}")
    srd(a, sO, 12, f"s{sA}", f"s{sB}")
    a(f"s_and_b32 s{sA}, s{sWV}, 3\ns_min_u32 s{sB}, s{sA}, 1\ns_mul_i32 s{sA}, s{sA}, 12\ns_add_u32 s{sA}, s{sA}, s{sB}")
    a(f"s_sub_u32 s{sB}, 13, s{sB}")
    a(f"v_and_b32 v{vT2}, 15, v{vL}\nv_cmp_gt_u32 {sr(sVAL,2)}, s{sB}, v{vT2}\nv_add_u32 v{vT2}, s{sA}, v{vT2}")
    a(f"v_and_b32 v{vT3}, 48, v{vL}\nv_lshl_add_u32 v{vOA}, v{vT2}, 7, v{vT3}")
    a(f"buffer_load_dwordx4 {vr(vXB,4)}, v{vOA}, {sr(sX,4)}, 0 offen")
    a(f"buffer_load_dwordx4 {vr(vXB+4,4)}, v{vOA}, {sr(sX,4)}, 0 offen offset:64")
    srd(a, sP, 14, WS_P - 3072, 256 * NPB, stride=128)
    a(f"s_lshr_b32 s{sA}, s2, 3\ns_lshl_b32 s{sA}, s{sA}, 3\ns_add_u32 s{sA}, s{sA}, s{sWV}\ns_mul_i32 s{sA}, s{sA}, {NPB}")
    a(f"v_min_u32 v{vT3}, {NPB-1}, v{vL}\nv_add_u32 v{vT3}, s{sA}, v{vT3}")
    a(f"buffer_load_dword v{vCHK}, v{vT3}, {sr(sP,4)}, 0 idxen offset:3072")
    srd(a, sW0, 14, WS_W0, 256 * CSTR * 4)
    srd(a, sEA, 14, WS_EA, 256 * CSTR * 8)
    z = vW
    a(f"v_subrev_u32 v{vT0}, 80, v0\nv_mul_u32_u24 v{vT3}, 57, v{vT0}\nv_lshrrev_b32 v{vT3}, 9, v{vT3}")
    a(f"v_mad_i32_i24 v{vT4}, v{vT3}, -10, v{vT0}\nv_max_i32 v{vT4}, 0, v{vT4}\nv_bfm_b32 v{vT4}, v{vT4}, v{vT3}")
    a(f"v_cmp_gt_u32 vcc, 81, v{vT0}\ns_mov_b32 s{sA}, 0x3f800000\ns_nop 0\nv_cndmask_b32 v{vT4}, 0, v{vT4}, vcc")
    for d in range(4):
        a(f"v_bfe_i32 v{z+d}, v{vT4}, {2*d}, 1\nv_bfe_i32 v{vT3}, v{vT4}, {2*d+1}, 1")
        a(f"v_and_b32 v{z+d}, 0x3f80, v{z+d}\nv_and_or_b32 v{z+d}, v{vT3}, s{sA}, v{z+d}")
    a(f"v_cmp_gt_u32 vcc, 80, v0\ns_mov_b64 exec, vcc")
    for d in range(4):
        a(f"v_mov_b32 v{z+d}, {LIST}")
    a(f"v_cmp_gt_u32 vcc, 16, v0\ns_mov_b64 exec, vcc\nv_mul_u32_u24 v{vT3}, {4*CAPB}, v0")
    for d in range(4):
        a(f"v_add_u32 v{z+d}, {LIST + CAPB*d}, v{vT3}")
    a("s_mov_b64 exec, -1")
    for d in range(4):
        a(f"v_mov_b32 v{z+4+d}, 0")
    a(f"ds_write_b128 v{vO16}, {vr(z,4)}\nds_write_b128 v{vO16}, {vr(z+4,4)} offset:8192\nds_write_b128 v{vO16}, {vr(z+4,4)} offset:16384")
    vI16, vWB, vN16 = vT0, vT3, vT4
    a(f"v_and_b32 v{vI16}, 7, v0\nv_lshlrev_b32 v{vI16}, 4, v{vI16}\nv_sub_u32 v{vN16}, 0, v{vI16}")
    a(f"v_lshrrev_b32 v{vT1}, 3, v0\nv_mul_u32_u24 v{vWB}, {4*CSTR*4}, v{vT1}\nv_add3_u32 v{vWB}, v{vWB}, s{sRND}, v{vI16}")
    a(f"v_lshlrev_b32 v{vT1}, 2, v{vT1}\nv_subrev_u32 v{vT1}, s{sG0}, v{vT1}")
    for q in range(4):
        a(f"v_cmp_gt_u32 {sr(sMK+8*q+2,2)}, s{sGG}, v{vT1}\nv_add_u32 v{vT1}, 1, v{vT1}")
    a(f"v_lshrrev_b32 v{vT2}, 1, v{vI16}")
    a("s_waitcnt vmcnt(7)")
    stamp()
    a(f"v_mov_b32 v{vLEN}, 0")
    for q in range(4):
        a(f"v_and_b32 v{vAW+q}, 0xffff, v{vTB+q}\nv_lshrrev_b32 v{vC+q}, 16, v{vTB+q}")
        a(f"v_add_u32 v{vAW+q}, v{vAW+q}, v{vWB}\nv_subrev_u32 v{vC+q}, s{sRND}, v{vC+q}")
        a(f"v_max_i32 v{vLEN}, v{vLEN}, v{vC+q}\nv_cndmask_b32 v{vC+q}, 0, v{vC+q}, {sr(sMK+8*q+2,2)}")
        a(f"v_cmp_lt_i32 {sr(sMK+8*q,2)}, v{vI16}, v{vC+q}")
        a(f"s_mov_b32 s{sA}, {q*CSTR*4}\nv_lshl_add_u32 v{vAE+q}, v{vAW+q}, 1, v{vN16}")
        a(f"s_or_b64 exec, {sr(sMK+8*q,2)}, 1")
        a(f"buffer_load_dwordx4 {vr(vW+4*q,4)}, v{vAW+q}, {sr(sW0,4)}, s{sA} offen")
        a("s_mov_b64 exec, -1")
    a(f"s_lshl_b32 s{sB}, s{sWV}, 13")
    for q in range(4):
        a(f"v_sub_u32 v{vT1}, v{vC+q}, v{vT2}")
        for hf in range(2):
            a(f"v_cmp_lt_i32 vcc, {64*hf}, v{vT1}")
            a(f"s_add_u32 m0, s{sB}, {EAI + 2048*q + 1024*hf}\ns_mov_b32 s{sA}, {q*CSTR*8 + 128*hf}")
            a("s_or_b64 exec, vcc, 1")
            a(f"buffer_load_dwordx4 v{vAE+q}, {sr(sEA,4)}, s{sA} offen lds")
        a("s_mov_b64 exec, -1")
    for q in range(4):
        a(f"v_sub_u32 v{vC+q}, v{vC+q}, v{vI16}")
        for r in range(1, 4):
            a(f"v_cmp_lt_i32 {sr(sMK+8*q+2*r,2)}, {4*r}, v{vC+q}")
    a("s_waitcnt vmcnt(13) lgkmcnt(0)\ns_barrier")
    a(f"v_cmp_lt_i32 vcc, 0x80, v{vLEN}\ns_cbranch_vccz K2_NOMORE")
    a(f"v_mov_b32 v{vT1}, 0\nds_write_b32 v{vT1}, v{vT1} offset:{FLG_MORE}\nK2_NOMORE:")
    wtr_addr(a, vWA, vL, vT1, vT2)
    a(f"s_cmp_ge_u32 s{sWV}, 4\ns_cselect_b32 s{sA}, 0, {W4I-W2I}\ns_add_u32 s{sA}, s{sA}, {W2I}")
    a(f"v_add_u32 v{vT1}, s{sA}, v{vWA}\nv_add_u32 v{vWA}, {W5I}, v{vWA}")
    wtr_reads(a, vWR, vT1, 0)
    a(f"v_and_b32 v{vT2}, 31, v{vL}\nv_lshlrev_b32 v{vT1}, 1, v{vT2}\nv_add_u32 v{vT1}, {W3I}, v{vT1}")
    vW3T = 88
    for m in range(2):
        for t in range(4):
            a(f"ds_read_u16 v{vW3T+4*m+t}, v{vT1} offset:{128*t+64*m}")
    a(f"v_and_b32 v{vT1}, 3, v0\nv_lshlrev_b32 v{vT1}, 5, v{vT1}\nv_bfe_u32 v{vT3}, v0, 2, 1\nv_lshl_add_u32 v{vT1}, v{vT3}, 10, v{vT1}")
    a(f"v_lshrrev_b32 v{vT3}, 3, v{vL}\nv_lshl_add_u32 v{vT1}, v{vT3}, 7, v{vT1}\nv_add_u32 v{vT1}, s{sB}, v{vT1}\nv_lshlrev_b32 v{vT1}, 16, v{vT1}")
    for q in range(4):
        for r in range(4):
            a(f"v_add_u32 v{vPOS+4*q+r}, {(2048*q+8*r) << 16:#x}, v{vT1}")
    a(f"v_lshrrev_b32 v{vT3}, 5, v{vL}\nv_lshlrev_b32 v{vT4}, 3, v{vT3}\nv_sub_u32 v{vT4}, v{vT2}, v{vT4}")
    a(f"v_and_b32 v{vT1}, 1, v{vL}\nv_lshlrev_b32 v{vT1}, 4, v{vT1}\ns_movk_i32 s{sA}, 0x3f80\nv_lshlrev_b32 v{vT1}, v{vT1}, s{sA}")
    a(f"v_ashrrev_i32 v{vT4}, 1, v{vT4}")
    for s in range(2):
        for d in range(4):
            a(f"v_cmp_eq_u32 vcc, {8*s+d}, v{vT4}\ns_nop 1\nv_cndmask_b32 v{vSEL+4*s+d}, 0, v{vT1}, vcc")
    a("s_waitcnt lgkmcnt(8)")
    small_mfma(a, vOUT, vWR, vXB)
    a("s_waitcnt lgkmcnt(0)")
    for i in range(8):
        a(f"v_lshlrev_b32 v{vW3T+i}, 16, v{vW3T+i}\nv_mul_f32 v{vW3T+i}, {f32bits(-LOG2E):#x}, v{vW3T+i}")
    for i in range(4):
        a(f"v_cvt_pk_bf16_f32 v{vW3+i}, v{vW3T+2*i}, v{vW3T+2*i+1}")
    a("s_mov_b32 exec_lo, 0")
    for i in range(4):
        a(f"v_lshlrev_b32 v{vT1}, 16, v{vW3+i}\nv_and_b32 v{vT2}, 0xffff0000, v{vW3+i}")
        a(f"v_sub_f32 v{vT1}, v{vW3T+2*i}, v{vT1}\nv_sub_f32 v{vT2}, v{vW3T+2*i+1}, v{vT2}")
        a(f"v_cvt_pk_bf16_f32 v{vW3+i}, v{vT1}, v{vT2}")
    a("s_mov_b32 exec_lo, -1")
    a(f"s_cmp_ge_u32 s{sWV}, 4\ns_cbranch_scc1 K2_QW")
    a(f"s_cmp_eq_u32 s{sFIRST}, 0\ns_cbranch_scc1 K2_SORT")
    for i in range(16):
        a(f"v_mul_f32 v{vU+i}, {f32bits(-LOG2E):#x}, v{vOUT+i}")
    a("s_branch K2_SORT\nK2_QW:")
    for i in range(16):
        a(f"v_mul_f32 v{vOUT+i}, {f32bits(-LOG2E):#x}, v{vOUT+i}")
    a(f"v_lshrrev_b32 v{vT1}, 7, v{vOA}\nv_mul_u32_u24 v{vT1}, {QSTR}, v{vT1}\nv_and_b32 v{vT2}, 48, v{vL}")
    a(f"v_lshl_add_u32 v{vT1}, v{vT2}, 1, v{vT1}\nv_add_u32 v{vT1}, {QB}, v{vT1}")
    for k in range(4):
        a(f"ds_write_b128 v{vT1}, {vr(vOUT+4*k,4)} offset:{128*(k>>1)+16*(k&1)}")
    a("K2_SORT:")
    a(f"v_mov_b32 v{vT0}, 4\ns_movk_i32 s{sA}, 0x3fff")
    for q in range(4):
        a(f"s_waitcnt vmcnt({11-q})")
        if q == 0:
            stamp()
        for r in range(4):
            k = 4 * q + r
            a(f"v_lshrrev_b32 v{vCA+k}, 12, v{vW+k}\nv_and_b32 v{vCA+k}, 0xfc, v{vCA+k}")
        for r in range(4):
            k = 4 * q + r
            a(f"s_mov_b64 exec, {sr(sMK+2*k,2)}\nds_add_rtn_u32 v{vCA+k}, v{vCA+k}, v{vT0} offset:{CNT}")
        a("s_mov_b64 exec, -1")
    for k in range(16):
        a(f"v_and_or_b32 v{vW+k}, v{vW+k}, s{sA}, v{vPOS+k}")
    a("s_waitcnt lgkmcnt(0)")
    for k in range(16):
        a(f"s_mov_b64 exec, {sr(sMK+2*k,2)}\nds_write_b32 v{vCA+k}, v{vW+k}")
    a("s_mov_b64 exec, -1")
    g8, jj = vT1, vT2
    a(f"s_lshl_b32 s{sSTG}, s{sWV}, 12\ns_add_u32 s{sSTG}, s{sSTG}, {STG}")
    a(f"v_lshrrev_b32 v{vT1}, 3, v{vL}\nv_and_b32 v{vT1}, 4, v{vT1}\nv_and_b32 v{vT2}, 7, v{vL}\nv_xor_b32 v{vT1}, v{vT1}, v{vT2}\nv_lshlrev_b32 v{vT1}, 4, v{vT1}")
    for j in range(4):
        a(f"v_xor_b32 v{vIDX+2*j+1}, {16*j + 1024*(3-j)}, v{vT1}")
    a(f"v_and_b32 v{vT1}, 3, v{vL}\nv_bfe_u32 v{vT2}, v{vL}, 2, 3\nv_lshl_add_u32 v{vT3}, v{vT1}, 3, v{vT2}")
    a(f"v_and_or_b32 v{vT1}, v{vT2}, 4, v{vT1}\nv_lshrrev_b32 v{vT2}, 5, v{vL}\nv_xor_b32 v{vT1}, v{vT1}, v{vT2}")
    a(f"v_lshlrev_b32 v{vT1}, 4, v{vT1}\nv_lshl_add_u32 v{vT1}, v{vT3}, 7, v{vT1}\nv_add_u32 v{vT1}, s{sSTG}, v{vT1}")
    for k in range(4):
        a(f"v_xor_b32 v{vXA+k}, {32*k}, v{vT1}")
    a(f"v_lshlrev_b32 v{vT4}, 2, v{vL}\nv_mul_u32_u24 v{vT3}, {CAPB}, v{vL}\nv_add_u32 v{vT3}, {LIST}, v{vT3}")
    a("s_waitcnt lgkmcnt(0)\ns_barrier")
    stamp()
    vK, vNP, vSC = 8, 9, 10
    a(f"ds_read_b32 v{vK}, v{vT4} offset:{CNT}")
    a(f"v_cmp_gt_u32 vcc, {NPB}, v{vL}\ns_mul_i32 s{sA}, s{sWV}, {4*L}\ns_waitcnt lgkmcnt(0)")
    a(f"v_sub_u32 v{vK}, v{vK}, v{vT3}\nv_cndmask_b32 v{vK}, 0, v{vK}, vcc")
    a(f"v_add_u32 v{vNP}, {4*(L-1)}, v{vK}\nv_mul_u32_u24 v{vNP}, 4370, v{vNP}\nv_lshrrev_b32 v{vNP}, 18, v{vNP}")
    a(f"v_mov_b32 v{vSC}, v{vNP}\nv_cmp_lt_u32 vcc, {CAPB}, v{vK}")
    wave_scan(a, vSC)
    a(f"v_subrev_u32 v{vK}, s{sA}, v{vK}\nv_add_u32 v{vT3}, s{sA}, v{vT3}")
    a(f"v_readlane_b32 s{sB}, v{vSC}, 63")
    a(f"v_min_i32 v{vK}, {4*L}, v{vK}\nv_lshl_or_b32 v{vT3}, v{vL}, 24, v{vT3}\nv_lshl_or_b32 v{vT3}, v{vK}, 14, v{vT3}")
    a("s_cbranch_vccnz K2_RETRY")
    a(f"s_cmp_gt_u32 s{sB}, 256\ns_cbranch_scc1 K2_RETRY")
    a(f"v_sub_u32 v{vT0}, v{vSC}, v{vNP}\nv_cmp_lt_u32 vcc, s{sWV}, v{vNP}")
    a(f"v_add_lshl_u32 v{vT2}, v{vT0}, s{sWV}, 2\nv_lshl_or_b32 v{vT0}, v{vSC}, 16, v{vT0}")
    a(f"s_mov_b64 exec, vcc\nds_write_b32 v{vT2}, v{vT3} offset:{PTAB}\ns_mov_b64 exec, -1")
    a(f"v_lshrrev_b32 v{vT2}, 5, v{vOA}\nv_and_b32 v{vT2}, 0xfc, v{vT2}\nds_bpermute_b32 v{vPBE}, v{vT2}, v{vT0}")
    a(f"s_lshl_b32 s{sA}, s{sWV}, 7")
    a(f"v_and_b32 v{vT2}, 31, v{vL}\nv_lshl_add_u32 v{vT2}, v{vT2}, 2, s{sA}")
    a(f"v_lshrrev_b32 v{vT3}, 3, v{vL}\nv_lshl_add_u32 v{vT3}, v{vT3}, 4, s{sA}")
    a("s_waitcnt vmcnt(0) lgkmcnt(0)\ns_barrier")
    stamp()
    a(f"ds_read_b128 {vr(vPA,4)}, v{vT3} offset:{PTAB}\nds_read_b32 v{vT4}, v{vT2} offset:{PTAB}")
    a(f"v_lshrrev_b32 v{vT1}, 5, v{vL}\nv_lshlrev_b32 v{vT1}, 4, v{vT1}\nv_add_u32 v{vT1}, {QB}, v{vT1}")
    a(f"s_movk_i32 s{sA}, {QSTR}\ns_waitcnt lgkmcnt(1)")
    for j in range(4):
        a(f"v_and_b32 v{vPA+j}, 0xffff, v{vPA+j}\nds_read_u16 v{vIDX+2*j}, v{vPA+j}")
    a("s_waitcnt lgkmcnt(4)")
    a(f"v_and_b32 v{vPO}, 0xffff, v{vT4}\nv_lshrrev_b32 v{vT2}, 24, v{vT4}\nv_mad_u32_u24 v{vT1}, v{vT2}, s{sA}, v{vT1}")
    a(f"ds_read_u16 v{vEAD}, v{vPO} offset:2\nv_bfe_u32 v{vLEN}, v{vT4}, 16, 8")
    a("s_waitcnt lgkmcnt(1)")
    dma(a, 0)
    idx_reads(a, 1)
    for k in range(8):
        a(f"ds_read_b128 {vr(vQ+4*k,4)}, v{vT1} offset:{32*k}")
    for t in range(1, L):
        a(f"v_cmp_lt_u32 {mask(t)}, {t}, v{vLEN}")
    a("s_waitcnt lgkmcnt(0)\ns_barrier")
    dma(a, 1)
    a(f"ds_read_b64 {vr(vEV,2)}, v{vEAD} offset:{EAI}")
    idx_reads(a, 2)
    a(f"ds_read_u16 v{vEAD}, v{vPO} offset:6")
    a(f"v_cndmask_b32 v{vPBE}, 0, v{vPBE}, {sr(sVAL,2)}\nv_mov_b32 v{vCHK}, 0\ns_nop 0")
    a(f"v_readfirstlane_b32 s{sKB}, v{vPBE}\nv_readlane_b32 s{sA}, v{vPBE}, 11\nv_readlane_b32 s{sB}, v{vPBE}, 12")
    a(f"s_bfe_u32 s{sKB}, s{sKB}, 0xb0005\ns_min_u32 s{sKB}, s{sKB}, 4\ns_max_u32 s{sA}, s{sA}, s{sB}\ns_lshr_b32 s{sA}, s{sA}, 16")
    a(f"s_lshl_b32 s{sB}, s{sKB}, 5\ns_add_u32 s{sB}, s{sB}, 128\ns_cmp_gt_u32 s{sA}, s{sB}")
    a(f"s_cselect_b32 s{sNP}, 2, 1\ns_cselect_b32 s{sKB}, 0, s{sKB}")
    s_lut_reads(a)
    a(f"v_and_b32 v{vT0}, 7, v{vL}\nv_bfe_u32 v{vT1}, v{vL}, 3, 1\nv_lshlrev_b32 v{vT1}, 2, v{vT1}\nv_xor_b32 v{vT0}, v{vT0}, v{vT1}")
    a(f"v_lshrrev_b32 v{vT1}, 5, v{vL}\nv_lshlrev_b32 v{vT1}, 1, v{vT1}\nv_xor_b32 v{vT0}, v{vT0}, v{vT1}\nv_lshlrev_b32 v{vT0}, 4, v{vT0}")
    a(f"v_and_b32 v{vT1}, 31, v{vL}\nv_lshl_add_u32 v{vT0}, v{vT1}, 7, v{vT0}\nv_add_u32 v{vT0}, s{sSTG}, v{vT0}")
    for m in range(2):
        for u in range(2):
            a(f"v_xor_b32 v{vPW+2*m+u}, {64*m+16*u}, v{vT0}")
    a(f"v_bfe_u32 v{vT0}, v{vL}, 2, 2\nv_bfe_u32 v{vT1}, v{vL}, 1, 1\nv_xor_b32 v{vT1}, v{vT0}, v{vT1}")
    a(f"v_bfe_u32 v{vT2}, v{vL}, 4, 1\nv_lshl_or_b32 v{vT1}, v{vT2}, 2, v{vT1}\nv_lshlrev_b32 v{vT1}, 4, v{vT1}")
    a(f"v_and_b32 v{vT2}, 1, v{vL}\nv_lshl_or_b32 v{vT1}, v{vT2}, 3, v{vT1}")
    a(f"v_lshrrev_b32 v{vT2}, 4, v{vL}\nv_lshl_add_u32 v{vT0}, v{vT2}, 3, v{vT0}\nv_lshl_add_u32 v{vT0}, v{vT0}, 7, v{vT1}")
    a(f"s_lshl_b32 s{sA}, s{sKB}, 12\ns_add_u32 s{sA}, s{sA}, {STG}\nv_add_u32 v{vT0}, s{sA}, v{vT0}")
    for k in range(4):
        a(f"v_xor_b32 v{vTR+k}, {32*k}, v{vT0}")
    a(f"s_cmp_lg_u32 s{sSAFE}, 0\ns_cbranch_scc1 K2_SAFE")
    a("s_waitcnt vmcnt(4)")
    stamp()
    x_reads(a, 0, 0)
    x_reads(a, 0, 1)
    a("s_waitcnt lgkmcnt(2)")
    for e in mfma_group(0, 0):
        a(e)
    a("s_nop 7")
    roles = opt.get("roles", "AB")
    a(f"s_cmp_ge_u32 s{sWV}, 4\ns_cbranch_scc1 K2_MAINB")
    main_loop(a, "A")
    a("s_branch K2_FLUSHED\nK2_MAINB:")
    main_loop(a, "B")
    a("K2_FLUSHED:")
    a(f"v_cmp_ngt_f32 vcc, {f32bits(2.0**90):#x}, v{vCHK}\ns_cbranch_vccz K2_JOIN")
    a(f"v_mov_b32 v{vT1}, 0\nds_write_b32 v{vT1}, v{vT1} offset:{FLG_NUM}")
    a("K2_JOIN:")
    stamp()
    a(f"v_mov_b32 v{vT1}, 0\ns_waitcnt lgkmcnt(0)\ns_barrier")
    vFL = 36
    a(f"ds_read_b64 {vr(vFL,2)}, v{vT1} offset:{FLG_MORE}")
    a(f"s_cmp_ge_u32 s{sWV}, 4\ns_cbranch_scc1 K2_NEXT")
    vR, vAG, vBO = 40, 8, 24
    a("K2_TAIL:")
    for k in range(4):
        for m in range(2):
            for h in range(2):
                for u in range(2):
                    d = vR + 16 * k + 4 * (2 * m + h) + 2 * u
                    a(f"ds_read_b64_tr_b16 {vr(d,2)}, v{vTR + 2*(m^u) + h} offset:{4096*k + 512*u}")
        if k == 1:
            a("s_waitcnt lgkmcnt(8)")
            a(f"v_readfirstlane_b32 s{sB}, v{vFL+1}")
        if k >= 1:
            if k > 1:
                a("s_waitcnt lgkmcnt(8)")
            for t in range(4):
                c = "0" if k == 1 else vr(vAG + 4 * t, 4)
                a(f"v_mfma_f32_16x16x32_bf16 {vr(vAG+4*t,4)}, {vr(vR+16*(k-1)+4*t,4)}, {vr(vS+4*(k-1),4)}, {c}")
    a("s_waitcnt lgkmcnt(0)")
    for t in range(4):
        a(f"v_mfma_f32_16x16x32_bf16 {vr(vAG+4*t,4)}, {vr(vR+48+4*t,4)}, {vr(vS+12,4)}, {vr(vAG+4*t,4)}")
    a(f"s_cmp_eq_u32 s{sB}, 0\ns_cbranch_scc1 K2_NEXT\ns_nop 2")
    for i in range(8):
        a(f"v_cvt_pk_bf16_f32 v{vBO+i}, v{vAG+2*i}, v{vAG+2*i+1}")
    a("s_nop 1")
    small_mfma(a, vU, vQ, vBO, cinit=True)
    a(f"s_cmp_eq_u32 s{sNP}, 2\ns_cbranch_scc0 K2_NEXT")
    a(f"s_mov_b32 s{sNP}, 1\ns_mov_b32 s{sKB}, 4")
    s_lut_reads(a)
    for k in range(4):
        a(f"v_add_u32 v{vTR+k}, 16384, v{vTR+k}")
    a("s_waitcnt lgkmcnt(0)\ns_branch K2_TAIL")
    a("K2_NEXT:\ns_waitcnt lgkmcnt(0)")
    a(f"v_readfirstlane_b32 s{sA}, v{vFL}\nv_readfirstlane_b32 s{sB}, v{vFL+1}")
    a(f"s_add_u32 s{sC}, s{sG0}, s{sGG}")
    a(f"s_cmp_eq_u32 s{sB}, 0\ns_cbranch_scc1 K2_TOSAFE")
    a(f"s_mov_b32 s{sFIRST}, 0\ns_mov_b32 s{sG0}, s{sC}\ns_cmp_lt_u32 s{sC}, 256\ns_cbranch_scc1 K2_AGAIN")
    a(f"s_mov_b32 s{sG0}, 0\ns_add_u32 s{sRND}, s{sRND}, 128\ns_cmp_eq_u32 s{sA}, 0\ns_cbranch_scc1 K2_AGAIN")
    a(f"s_cmp_ge_u32 s{sWV}, 4\ns_cbranch_scc1 K2_END")
    vZ = 40
    a(f"v_mov_b32 v{vT1}, {f32bits(-LOG2E):#x}")
    for mh in range(2):
        for i in range(8 * mh, 8 * mh + 8):
            a(f"v_exp_f32 v{vZ+i}, v{vU+i}")
        for i in range(8 * mh, 8 * mh + 8):
            a(f"v_fma_f32 v{vZ+i}, v{vZ+i}, v{vT1}, v{vT1}")
        for i in range(8 * mh, 8 * mh + 8):
            a(f"v_rcp_f32 v{vZ+i}, v{vZ+i}")
        for i in range(8 * mh, 8 * mh + 8):
            a(f"v_mul_f32 v{vZ+i}, v{vZ+i}, v{vU+i}")
        for i in range(4 * mh, 4 * mh + 4):
            a(f"v_cvt_pk_bf16_f32 v{vBO+i}, v{vZ+2*i}, v{vZ+2*i+1}")
        a(f"s_mov_b64 exec, {sr(sVAL,2)}")
        a(f"buffer_store_dwordx4 {vr(vBO+4*mh,4)}, v{vOA}, {sr(sO,4)}, 0 offen offset:{64*mh}")
    if opt.get("stamp"):
        a("s_mov_b64 exec, -1")
        stamp()
        a("s_waitcnt vmcnt(0)")
        stamp()
        a(f"s_lshl_b32 s{sA}, s2, 2\ns_add_u32 s{sA}, s{sA}, s{sWV}\ns_lshl_b32 s{sA}, s{sA}, 6\ns_add_u32 s{sA}, s{sA}, {WS_DBG + 65536}")
        srd(a, sX, 14, f"s{sA}", 64)
        a(f"v_lshlrev_b32 v2, 2, v{vL}\nbuffer_store_dword v3, v2, {sr(sX,4)}, 0 offen")
    a("K2_END:\ns_endpgm")
    a(f"K2_RETRY:\ns_lshr_b32 s{sGG}, s{sGG}, 1\ns_cbranch_scc0 K2_END\ns_branch K2_AGAIN")
    a(f"K2_TOSAFE:\ns_mov_b32 s{sSAFE}, 1")
    a("K2_AGAIN:\ns_waitcnt vmcnt(0) lgkmcnt(0)\ns_barrier")
    a(f"v_lshrrev_b32 v{vT1}, 3, v0\nv_lshlrev_b32 v{vT1}, 4, v{vT1}\nv_lshlrev_b32 v{vO16}, 4, v0\ns_branch K2_ROUND")
    a("K2_SAFE:")
    safe_loop(a)
    a("s_branch K2_JOIN")
    return a.text(), kd(name, 256, 102)
```

```python
import sys
from asmlib import *
from common import *
import k1, k2
HDR = open("standalone__mpnn_edge_mlp__graph.s.ref").read().split("; Override launch")[0]
def build(opt):
    n1, n2 = "mpnn_bin_kernel", "standalone__mpnn_edge_mlp__graph_kernel"
    t1, d1 = k1.gen_k1(n1, opt)
    t2, d2 = k2.gen_k2(n2, opt)
    s = HDR
    s += f"; @launch kernel={n1} grid=(256,1,1) block=(512,1,1) lds={k1.K1_LDS}\n"
    s += f"; @launch kernel={n2} grid=(256,1,1) block=(512,1,1) lds={k2.K2_LDS}\n"
    s += '.amdgcn_target "amdgcn-amd-amdhsa--gfx950"\n.text\n' + t1 + t2
    s += '.section .rodata,"a"\n.p2align 6\n' + d1 + ".p2align 6\n" + d2
    return s
if __name__ == "__main__":
    out = sys.argv[1]
    opt = {}
    for kv in sys.argv[2:]:
        k, v = kv.split("=")
        opt[k] = int(v) if v.lstrip("-").isdigit() else v
    open(out, "w").write(build(opt))
```

```python
from asmlib import *
from common import *
from k1 import wtr_addr, wtr_reads, small_mfma

L = 15
GATHER = ""
CAPB = 448
CNT, PTAB, LUT, LIST, EAI = 0, 256, 1280, 2576, 24576
STG = EAI + 65536
BUF1 = 32768
W5I = STG + 65536
K2_LDS = W5I + 8192
W2I, W3I, W4I = STG, STG + 8192, STG + 12288
QB, QSTR = STG + BUF1, 272
FLG_MORE, FLG_NUM = 4 * 62, 4 * 63

vL = 1
vN, vY, vD, vE = 4, 38, 73, 107
vQ, vX, vSEL, vW3, vEV, vIDX, vPA, vXA, vU, vS = 124, 156, 172, 180, 184, 188, 196, 200, 204, 220
vPO, vEAD, vPW, vTR, vWA, vOA, vPBE, vLEN, vCHK = 236, 237, 238, 242, 246, 247, 248, 249, 250
vT0, vT1, vT2, vT3, vT4 = 251, 252, 253, 254, 255
sT, sW0, sEA, sP, sO, sX, sWM, sWU = 16, 20, 24, 28, 32, 36, 40, 44
sMK = 48
sWV, sRND, sG0, sGG, sSAFE, sFIRST, sSTG, sKB, sNP, sVAL = 80, 81, 82, 83, 84, 85, 86, 87, 88, 90
sA, sB, sC = 92, 93, 94

def mask(t):
    return "-1" if t == 0 else sr(sMK + 2 * t, 2)

def mfma_group(tau, m):
    d = (vN if tau == 0 else vY) + 16 * m
    return [f"v_mfma_f32_32x32x8_bf16 {vr(d,16)}, {vr(vW3+2*m,2)}, {vr(vEV+2*(tau&1),2)}, {vr(vQ+16*m,16)}",
            f"v_mfma_f32_32x32x16_bf16 {vr(d,16)}, {vr(vSEL,4)}, {vr(vX+8*m,4)}, {vr(d,16)}",
            f"v_mfma_f32_32x32x16_bf16 {vr(d,16)}, {vr(vSEL+4,4)}, {vr(vX+8*m+4,4)}, {vr(d,16)}"]

def dma(a, tau):
    a(f"s_add_u32 m0, s{sSTG}, {BUF1*(tau&1)}")
    a("s_nop 0")
    for j in range(4):
        a(f"buffer_load_dwordx4 {vr(vIDX+2*j,2)}, {sr(sP,4)}, 0 idxen offen offset:{1024*j}{GATHER} lds")

def idx_reads(a, tau):
    for j in range(4):
        a(f"ds_read_u16 v{vIDX+2*j}, v{vPA+j} offset:{4*tau}")

def x_reads(a, tau, m):
    for s in range(2):
        a(f"ds_read_b128 {vr(vX+8*m+4*s,4)}, v{vXA+2*m+s} offset:{BUF1*(tau&1)}")

def block(a, tau, m, endmask):
    a("s_mov_b64 exec, -1")
    if m == 0:
        a("s_waitcnt vmcnt(0) lgkmcnt(0)")
        if tau + 1 < L:
            if tau + 2 < L:
                a(f"s_add_u32 m0, s{sSTG}, {BUF1*(tau&1)}")
            x_reads(a, tau + 1, 0)
            a(f"ds_read_b64 {vr(vEV+2*((tau+1)&1),2)}, v{vEAD} offset:{EAI}")
        if tau + 2 < L:
            for j in range(4):
                a(f"buffer_load_dwordx4 {vr(vIDX+2*j,2)}, {sr(sP,4)}, 0 idxen offen offset:{1024*j}{GATHER} lds")
    else:
        if tau + 1 < L:
            a("s_waitcnt lgkmcnt(0)")
            x_reads(a, tau + 1, 1)
        if tau + 3 < L:
            idx_reads(a, tau + 3)
        if tau + 2 < L:
            a(f"ds_read_u16 v{vEAD}, v{vPO} offset:{4*(tau+2)+2}")
    if endmask != "-1":
        a(f"s_mov_b64 exec, {endmask}")

def trans(a, tau, m, prio, extra=()):
    src = (vN if tau == 0 else vY) + 16 * m
    dst = vD + 16 * m if tau == 0 else vE
    nxt = (tau, 1) if m == 0 else (tau + 1, 0)
    mf = mfma_group(*nxt) if nxt[0] < L else []
    a(f"s_setprio {prio}")
    for e in extra:
        a(e)
    for i in range(16):
        if i in (2, 6, 10) and mf:
            a(mf.pop(0))
        a(f"v_exp_f32 v{dst+i}, v{src+i}")
    a("s_setprio 0")

def dual(a, tau, m):
    n, d, y = vN + 16 * m, vD + 16 * m, vY + 16 * m
    if tau == 0:
        for i in range(16):
            a(f"v_add_f32 v{d+i}, 1.0, v{d+i}")
        return
    for i in range(16):
        a(f"v_fmac_f32 v{n+i}, v{n+i}, v{vE+i}")
    for i in range(16):
        a(f"v_fmac_f32 v{n+i}, v{y+i}, v{d+i}")
    for i in range(16):
        a(f"v_fmac_f32 v{d+i}, v{d+i}, v{vE+i}")

def flush_pre(a, m):
    n, d, p = vN + 16 * m, vD + 16 * m, vY + 16 * m
    for i in range(8):
        a(f"v_mul_f32 v{p+i}, v{d+2*i}, v{d+2*i+1}")
    for i in range(8):
        a(f"v_mul_f32 v{n+2*i}, v{n+2*i}, v{d+2*i+1}")
        a(f"v_mul_f32 v{n+2*i+1}, v{n+2*i+1}, v{d+2*i}")
    for i in range(8):
        a(f"v_add_f32 v{vCHK}, v{vCHK}, v{p+i}")

def flush_rcp(m):
    p = vY + 16 * m
    return [f"v_rcp_f32 v{p+i}, v{p+i}" for i in range(8)]

def flush_mul(a, m):
    n, p = vN + 16 * m, vY + 16 * m
    for i in range(16):
        a(f"v_mul_f32 v{n+i}, v{n+i}, v{p+(i>>1)}")

def flush_out(a, m):
    n, o = vN + 16 * m, vY + 16 * m + 8
    for u in range(2):
        for i in range(4):
            a(f"v_cvt_pk_bf16_f32 v{o+4*u+i}, v{n+8*u+2*i}, v{n+8*u+2*i+1}")
        a(f"ds_write_b128 v{vPW+2*m+u}, {vr(o+4*u,4)}")

def main_loop(a, role):
    prio = 2 if role == "A" else 1
    halves = [(t, m) for t in range(L) for m in range(2)]
    if role == "A":
        block(a, 0, 0, "-1")
    for k, (t, m) in enumerate(halves):
        last = k == len(halves) - 1
        if role == "B":
            block(a, t, m, "-1" if last else mask(t))
        trans(a, t, m, prio, flush_rcp(0) if last else ())
        if role == "A":
            if not last:
                block(a, *halves[k + 1], mask(t))
            else:
                wtr_reads(a, vQ, vWA, 0)
        if last:
            flush_mul(a, 0)
            a(f"s_mov_b64 exec, {mask(t)}")
        dual(a, t, m)
        if t == L - 1:
            a("s_mov_b64 exec, -1")
            flush_pre(a, m)
    a(f"s_setprio {prio}")
    for e in flush_rcp(1):
        a(e)
    flush_out(a, 0)
    a("s_setprio 0")
    flush_mul(a, 1)
    flush_out(a, 1)

def safe_loop(a):
    a("s_waitcnt vmcnt(0) lgkmcnt(0)")
    for i in range(32):
        a(f"v_mov_b32 v{vN+i}, 0")
    a(f"s_mov_b32 s{sA}, 0\nK2_SAFE_L:")
    idx_reads(a, 0)
    a(f"ds_read_u16 v{vEAD}, v{vPO} offset:2\ns_waitcnt lgkmcnt(0)")
    dma(a, 1)
    a(f"ds_read_b64 {vr(vEV+2,2)}, v{vEAD} offset:{EAI}\ns_waitcnt vmcnt(0)")
    x_reads(a, 1, 0)
    x_reads(a, 1, 1)
    a("s_waitcnt lgkmcnt(0)")
    for m in range(2):
        for e in mfma_group(1, m):
            a(e)
    for j in range(4):
        a(f"v_add_u32 v{vPA+j}, 4, v{vPA+j}")
    a(f"v_add_u32 v{vPO}, 4, v{vPO}\nv_cmp_lt_u32 vcc, s{sA}, v{vLEN}\ns_nop 15\ns_mov_b64 exec, vcc")
    for i in range(32):
        a(f"v_exp_f32 v{vD+i}, v{vY+i}")
    for i in range(32):
        a(f"v_add_f32 v{vD+i}, 1.0, v{vD+i}")
    for i in range(32):
        a(f"v_rcp_f32 v{vD+i}, v{vD+i}")
    for i in range(32):
        a(f"v_fmac_f32 v{vN+i}, v{vY+i}, v{vD+i}")
    a(f"s_mov_b64 exec, -1\ns_add_u32 s{sA}, s{sA}, 1\ns_cmp_lt_u32 s{sA}, {L}\ns_cbranch_scc1 K2_SAFE_L")
    wtr_reads(a, vQ, vWA, 0)
    flush_out(a, 0)
    flush_out(a, 1)

def s_lut_reads(a):
    a(f"v_lshrrev_b32 v{vT0}, 4, v{vL}\nv_lshlrev_b32 v{vT0}, 3, v{vT0}\ns_lshl_b32 s{sA}, s{sKB}, 5")
    a(f"v_add_u32 v{vT0}, s{sA}, v{vT0}")
    a(f"v_and_b32 v{vT1}, 0xffff, v{vPBE}\nv_lshrrev_b32 v{vT2}, 16, v{vPBE}")
    a(f"v_sub_u32 v{vT1}, v{vT1}, v{vT0}\nv_sub_u32 v{vT2}, v{vT2}, v{vT0}")
    for k in range(4):
        a(f"v_med3_i32 v{vT3}, v{vT1}, 0, 8\nv_med3_i32 v{vT4}, v{vT2}, 0, 8")
        a(f"v_mad_u32_u24 v{vT3}, v{vT3}, 9, v{vT4}\nv_lshlrev_b32 v{vT3}, 4, v{vT3}")
        a(f"ds_read_b128 {vr(vS+4*k,4)}, v{vT3} offset:{LUT}")
        if k < 3:
            a(f"v_subrev_u32 v{vT1}, 32, v{vT1}\nv_subrev_u32 v{vT2}, 32, v{vT2}")

def gen_k2(name, opt):
    a = Asm()
    nst = [0]
    def stamp():
        if opt.get("stamp"):
            a(f"s_memrealtime s[96:97]\ns_memtime s[98:99]\ns_waitcnt lgkmcnt(0)\nv_writelane_b32 v3, s96, {nst[0]}\nv_writelane_b32 v3, s98, {16+nst[0]}")
            nst[0] += 1
    vTB, vXB, vO16 = 8, 12, 2
    vW, vCA, vPOS, vAW, vAE, vC = 20, 40, 56, 76, 80, 84
    vWR, vOUT = vQ, vX
    a(f".p2align 8\n.globl {name}\n.type {name},@function\n{name}:")
    a("s_cmp_ge_u32 s2, 256\ns_cbranch_scc1 K2_END")
    a("s_lshr_b32 s3, s2, 3")
    if opt.get("remap", 1):
        a("s_and_b32 s2, s2, 7\ns_lshl_b32 s2, s2, 5\ns_add_u32 s2, s2, s3")
    a("s_load_dwordx2 s[14:15], s[0:1], 64\ns_load_dwordx2 s[4:5], s[0:1], 0\ns_load_dwordx4 s[8:11], s[0:1], 32\ns_load_dwordx2 s[12:13], s[0:1], 48")
    a(f"v_lshrrev_b32 v{vT0}, 6, v0\nv_and_b32 v{vL}, 63, v0\nv_lshlrev_b32 v{vO16}, 4, v0")
    a(f"v_readfirstlane_b32 s{sWV}, v{vT0}")
    a(f"s_mov_b32 s{sRND}, 0\ns_mov_b32 s{sG0}, 0\ns_mov_b32 s{sGG}, 256\ns_mov_b32 s{sSAFE}, {1 if opt.get('force_safe') else 0}\ns_mov_b32 s{sFIRST}, 1")
    if opt.get("force_gg"):
        a(f"s_mov_b32 s{sGG}, {opt['force_gg']}")
    a(f"s_lshl_b32 s{sA}, s2, 10\ns_add_u32 s{sA}, s{sA}, {WS_TBL}")
    a(f"v_lshrrev_b32 v{vT1}, 3, v0\nv_lshlrev_b32 v{vT1}, 4, v{vT1}")
    if opt.get("stamp"):
        a("v_mov_b32 v3, 0")
    stamp()
    a("s_waitcnt lgkmcnt(0)")
    srd(a, sT, 14, f"s{sA}", 1024)
    a("K2_ROUND:")
    a(f"buffer_load_dwordx4 {vr(vTB,4)}, v{vT1}, {sr(sT,4)}, 0 offen")
    srd(a, sWM, 8, 8192, 8704)
    srd(a, sWU, 10, None, 16384)
    a(f"s_lshl_b32 s{sB}, s{sWV}, 10\ns_mov_b32 s{sC}, 8192")
    a(f"s_add_u32 m0, s{sB}, {W2I}\nv_lshlrev_b32 v{vT0}, 2, v0")
    a(f"buffer_load_dwordx4 v{vO16}, {sr(sWM,4)}, 0 offen lds")
    a(f"s_add_u32 m0, s{sB}, {W4I}\ns_lshl_b32 s{sA}, s{sWV}, 8")
    a(f"buffer_load_dwordx4 v{vO16}, {sr(sWU,4)}, 0 offen lds")
    a(f"s_add_u32 m0, s{sA}, {W3I}\ns_nop 0")
    a(f"buffer_load_dword v{vT0}, {sr(sWM,4)}, s{sC} offen lds")
    a(f"s_add_u32 m0, s{sB}, {W5I}\ns_nop 0")
    a(f"buffer_load_dwordx4 v{vO16}, {sr(sWU,4)}, s{sC} offen lds")
    a(f"s_mul_i32 s{sA}, s2, {NPB*128}\ns_sub_u32 s{sB}, {N*128}, s{sA}")
    srd(a, sX, 4, f"s{sA}", f"s{sB}")
    a(f"s_min_u32 s{sB}, s{sB}, {NPB*128}")
    srd(a, sO, 12, f"s{sA}", f"s{sB}")
    a(f"s_and_b32 s{sA}, s{sWV}, 3\ns_min_u32 s{sB}, s{sA}, 1\ns_mul_i32 s{sA}, s{sA}, 12\ns_add_u32 s{sA}, s{sA}, s{sB}")
    a(f"s_sub_u32 s{sB}, 13, s{sB}")
    a(f"v_and_b32 v{vT2}, 15, v{vL}\nv_cmp_gt_u32 {sr(sVAL,2)}, s{sB}, v{vT2}\nv_add_u32 v{vT2}, s{sA}, v{vT2}")
    a(f"v_and_b32 v{vT3}, 48, v{vL}\nv_lshl_add_u32 v{vOA}, v{vT2}, 7, v{vT3}")
    a(f"buffer_load_dwordx4 {vr(vXB,4)}, v{vOA}, {sr(sX,4)}, 0 offen")
    a(f"buffer_load_dwordx4 {vr(vXB+4,4)}, v{vOA}, {sr(sX,4)}, 0 offen offset:64")
    srd(a, sP, 14, WS_P - 3072, 256 * NPB, stride=128)
    pf = opt.get("pf", 2)
    a(f"s_lshl_b32 s{sA}, s3, 3\ns_add_u32 s{sA}, s{sA}, s{sWV}\ns_mul_i32 s{sA}, s{sA}, {NPB}")
    a(f"v_min_u32 v{vCHK}, {NPB-1}, v{vL}\nv_add_u32 v{vCHK}, s{sA}, v{vCHK}")
    pfl = f"buffer_load_dword v{vCHK}, v{vCHK}, {sr(sP,4)}, 0 idxen offset:3072"
    if pf == 1:
        a(pfl)
    srd(a, sW0, 14, WS_W0, 256 * CSTR * 4)
    srd(a, sEA, 14, WS_EA, 256 * CSTR * 8)
    z = vW
    a(f"v_subrev_u32 v{vT0}, 80, v0\nv_mul_u32_u24 v{vT3}, 57, v{vT0}\nv_lshrrev_b32 v{vT3}, 9, v{vT3}")
    a(f"v_mad_i32_i24 v{vT4}, v{vT3}, -10, v{vT0}\nv_max_i32 v{vT4}, 0, v{vT4}\nv_bfm_b32 v{vT4}, v{vT4}, v{vT3}")
    a(f"v_cmp_gt_u32 vcc, 81, v{vT0}\ns_mov_b32 s{sA}, 0x3f800000\ns_nop 0\nv_cndmask_b32 v{vT4}, 0, v{vT4}, vcc")
    for d in range(4):
        a(f"v_bfe_i32 v{z+d}, v{vT4}, {2*d}, 1\nv_bfe_i32 v{vT3}, v{vT4}, {2*d+1}, 1")
        a(f"v_and_b32 v{z+d}, 0x3f80, v{z+d}\nv_and_or_b32 v{z+d}, v{vT3}, s{sA}, v{z+d}")
    a(f"v_cmp_gt_u32 vcc, 80, v0\ns_mov_b64 exec, vcc")
    for d in range(4):
        a(f"v_mov_b32 v{z+d}, {LIST}")
    a(f"v_cmp_gt_u32 vcc, 16, v0\ns_mov_b64 exec, vcc\nv_mul_u32_u24 v{vT3}, {4*CAPB}, v0")
    for d in range(4):
        a(f"v_add_u32 v{z+d}, {LIST + CAPB*d}, v{vT3}")
    a("s_mov_b64 exec, -1")
    for d in range(4):
        a(f"v_mov_b32 v{z+4+d}, 0")
    a(f"ds_write_b128 v{vO16}, {vr(z,4)}\nds_write_b128 v{vO16}, {vr(z+4,4)} offset:8192\nds_write_b128 v{vO16}, {vr(z+4,4)} offset:16384")
    vI16, vWB, vN16 = vT0, vT3, vT4
    a(f"v_and_b32 v{vI16}, 7, v0\nv_lshlrev_b32 v{vI16}, 4, v{vI16}\nv_sub_u32 v{vN16}, 0, v{vI16}")
    a(f"v_lshrrev_b32 v{vT1}, 3, v0\nv_mul_u32_u24 v{vWB}, {4*CSTR*4}, v{vT1}\nv_add3_u32 v{vWB}, v{vWB}, s{sRND}, v{vI16}")
    a(f"v_lshlrev_b32 v{vT1}, 2, v{vT1}\nv_subrev_u32 v{vT1}, s{sG0}, v{vT1}")
    for q in range(4):
        a(f"v_cmp_gt_u32 {sr(sMK+8*q+2,2)}, s{sGG}, v{vT1}\nv_add_u32 v{vT1}, 1, v{vT1}")
    a(f"v_lshrrev_b32 v{vT2}, 1, v{vI16}")
    a(f"s_waitcnt vmcnt({7 if pf == 1 else 6})")
    stamp()
    a(f"v_mov_b32 v{vLEN}, 0")
    for q in range(4):
        a(f"v_and_b32 v{vAW+q}, 0xffff, v{vTB+q}\nv_lshrrev_b32 v{vC+q}, 16, v{vTB+q}")
        a(f"v_add_u32 v{vAW+q}, v{vAW+q}, v{vWB}\nv_subrev_u32 v{vC+q}, s{sRND}, v{vC+q}")
        a(f"v_max_i32 v{vLEN}, v{vLEN}, v{vC+q}\nv_cndmask_b32 v{vC+q}, 0, v{vC+q}, {sr(sMK+8*q+2,2)}")
        a(f"v_cmp_lt_i32 {sr(sMK+8*q,2)}, v{vI16}, v{vC+q}")
        a(f"s_mov_b32 s{sA}, {q*CSTR*4}\nv_lshl_add_u32 v{vAE+q}, v{vAW+q}, 1, v{vN16}")
        a(f"s_or_b64 exec, {sr(sMK+8*q,2)}, 1")
        a(f"buffer_load_dwordx4 {vr(vW+4*q,4)}, v{vAW+q}, {sr(sW0,4)}, s{sA} offen")
        a("s_mov_b64 exec, -1")
    a(f"s_lshl_b32 s{sB}, s{sWV}, 13")
    for q in range(4):
        a(f"v_sub_u32 v{vT1}, v{vC+q}, v{vT2}")
        for hf in range(2):
            a(f"v_cmp_lt_i32 vcc, {64*hf}, v{vT1}")
            a(f"s_add_u32 m0, s{sB}, {EAI + 2048*q + 1024*hf}\ns_mov_b32 s{sA}, {q*CSTR*8 + 128*hf}")
            a("s_or_b64 exec, vcc, 1")
            a(f"buffer_load_dwordx4 v{vAE+q}, {sr(sEA,4)}, s{sA} offen lds")
        a("s_mov_b64 exec, -1")
    if pf == 2:
        a(pfl)
    for q in range(4):
        a(f"v_sub_u32 v{vC+q}, v{vC+q}, v{vI16}")
        for r in range(1, 4):
            a(f"v_cmp_lt_i32 {sr(sMK+8*q+2*r,2)}, {4*r}, v{vC+q}")
    a(f"s_waitcnt vmcnt({13 if pf else 12}) lgkmcnt(0)\ns_barrier")
    stamp()
    a(f"v_cmp_lt_i32 vcc, 0x80, v{vLEN}\ns_cbranch_vccz K2_NOMORE")
    a(f"v_mov_b32 v{vT1}, 0\nds_write_b32 v{vT1}, v{vT1} offset:{FLG_MORE}\nK2_NOMORE:")
    wtr_addr(a, vWA, vL, vT1, vT2)
    a(f"s_cmp_ge_u32 s{sWV}, 4\ns_cselect_b32 s{sA}, 0, {W4I-W2I}\ns_add_u32 s{sA}, s{sA}, {W2I}")
    a(f"v_add_u32 v{vT1}, s{sA}, v{vWA}\nv_add_u32 v{vWA}, {W5I}, v{vWA}")
    wtr_reads(a, vWR, vT1, 0)
    a(f"v_and_b32 v{vT2}, 31, v{vL}\nv_lshlrev_b32 v{vT1}, 1, v{vT2}\nv_add_u32 v{vT1}, {W3I}, v{vT1}")
    vW3T = 88
    for m in range(2):
        for t in range(4):
            a(f"ds_read_u16 v{vW3T+4*m+t}, v{vT1} offset:{128*t+64*m}")
    a(f"v_and_b32 v{vT1}, 3, v0\nv_lshlrev_b32 v{vT1}, 5, v{vT1}\nv_bfe_u32 v{vT3}, v0, 2, 1\nv_lshl_add_u32 v{vT1}, v{vT3}, 10, v{vT1}")
    a(f"v_lshrrev_b32 v{vT3}, 3, v{vL}\nv_lshl_add_u32 v{vT1}, v{vT3}, 7, v{vT1}\nv_add_u32 v{vT1}, s{sB}, v{vT1}\nv_lshlrev_b32 v{vT1}, 16, v{vT1}")
    for q in range(4):
        for r in range(4):
            a(f"v_add_u32 v{vPOS+4*q+r}, {(2048*q+8*r) << 16:#x}, v{vT1}")
    a(f"v_lshrrev_b32 v{vT3}, 5, v{vL}\nv_lshlrev_b32 v{vT4}, 3, v{vT3}\nv_sub_u32 v{vT4}, v{vT2}, v{vT4}")
    a(f"v_and_b32 v{vT1}, 1, v{vL}\nv_lshlrev_b32 v{vT1}, 4, v{vT1}\ns_movk_i32 s{sA}, 0x3f80\nv_lshlrev_b32 v{vT1}, v{vT1}, s{sA}")
    a(f"v_ashrrev_i32 v{vT4}, 1, v{vT4}")
    for s in range(2):
        for d in range(4):
            a(f"v_cmp_eq_u32 vcc, {8*s+d}, v{vT4}\ns_nop 1\nv_cndmask_b32 v{vSEL+4*s+d}, 0, v{vT1}, vcc")
    a("s_waitcnt lgkmcnt(8)")
    small_mfma(a, vOUT, vWR, vXB)
    a("s_waitcnt lgkmcnt(0)")
    for i in range(8):
        a(f"v_lshlrev_b32 v{vW3T+i}, 16, v{vW3T+i}\nv_mul_f32 v{vW3T+i}, {f32bits(-LOG2E):#x}, v{vW3T+i}")
    for i in range(4):
        a(f"v_cvt_pk_bf16_f32 v{vW3+i}, v{vW3T+2*i}, v{vW3T+2*i+1}")
    a("s_mov_b32 exec_lo, 0")
    for i in range(4):
        a(f"v_lshlrev_b32 v{vT1}, 16, v{vW3+i}\nv_and_b32 v{vT2}, 0xffff0000, v{vW3+i}")
        a(f"v_sub_f32 v{vT1}, v{vW3T+2*i}, v{vT1}\nv_sub_f32 v{vT2}, v{vW3T+2*i+1}, v{vT2}")
        a(f"v_cvt_pk_bf16_f32 v{vW3+i}, v{vT1}, v{vT2}")
    a("s_mov_b32 exec_lo, -1")
    a(f"s_cmp_ge_u32 s{sWV}, 4\ns_cbranch_scc1 K2_QW")
    a(f"s_cmp_eq_u32 s{sFIRST}, 0\ns_cbranch_scc1 K2_SORT")
    for i in range(16):
        a(f"v_mul_f32 v{vU+i}, {f32bits(-LOG2E):#x}, v{vOUT+i}")
    a("s_branch K2_SORT\nK2_QW:")
    for i in range(16):
        a(f"v_mul_f32 v{vOUT+i}, {f32bits(-LOG2E):#x}, v{vOUT+i}")
    a(f"v_lshrrev_b32 v{vT1}, 7, v{vOA}\nv_mul_u32_u24 v{vT1}, {QSTR}, v{vT1}\nv_and_b32 v{vT2}, 48, v{vL}")
    a(f"v_lshl_add_u32 v{vT1}, v{vT2}, 1, v{vT1}\nv_add_u32 v{vT1}, {QB}, v{vT1}")
    for k in range(4):
        a(f"ds_write_b128 v{vT1}, {vr(vOUT+4*k,4)} offset:{128*(k>>1)+16*(k&1)}")
    a("K2_SORT:")
    a(f"v_mov_b32 v{vT0}, 4\ns_movk_i32 s{sA}, 0x3fff")
    for q in range(4):
        a(f"s_waitcnt vmcnt({(12 if pf == 2 else 11)-q})")
        if q == 0:
            stamp()
        for r in range(4):
            k = 4 * q + r
            a(f"v_lshrrev_b32 v{vCA+k}, 12, v{vW+k}\nv_and_b32 v{vCA+k}, 0xfc, v{vCA+k}")
        for r in range(4):
            k = 4 * q + r
            a(f"s_mov_b64 exec, {sr(sMK+2*k,2)}\nds_add_rtn_u32 v{vCA+k}, v{vCA+k}, v{vT0} offset:{CNT}")
        a("s_mov_b64 exec, -1")
    for k in range(16):
        a(f"v_and_or_b32 v{vW+k}, v{vW+k}, s{sA}, v{vPOS+k}")
    a("s_waitcnt lgkmcnt(0)")
    for k in range(16):
        a(f"s_mov_b64 exec, {sr(sMK+2*k,2)}\nds_write_b32 v{vCA+k}, v{vW+k}")
    a("s_mov_b64 exec, -1")
    g8, jj = vT1, vT2
    a(f"s_lshl_b32 s{sSTG}, s{sWV}, 12\ns_add_u32 s{sSTG}, s{sSTG}, {STG}")
    a(f"v_lshrrev_b32 v{vT1}, 3, v{vL}\nv_and_b32 v{vT1}, 4, v{vT1}\nv_and_b32 v{vT2}, 7, v{vL}\nv_xor_b32 v{vT1}, v{vT1}, v{vT2}\nv_lshlrev_b32 v{vT1}, 4, v{vT1}")
    for j in range(4):
        a(f"v_xor_b32 v{vIDX+2*j+1}, {16*j + 1024*(3-j)}, v{vT1}")
    a(f"v_and_b32 v{vT1}, 3, v{vL}\nv_bfe_u32 v{vT2}, v{vL}, 2, 3\nv_lshl_add_u32 v{vT3}, v{vT1}, 3, v{vT2}")
    a(f"v_and_or_b32 v{vT1}, v{vT2}, 4, v{vT1}\nv_lshrrev_b32 v{vT2}, 5, v{vL}\nv_xor_b32 v{vT1}, v{vT1}, v{vT2}")
    a(f"v_lshlrev_b32 v{vT1}, 4, v{vT1}\nv_lshl_add_u32 v{vT1}, v{vT3}, 7, v{vT1}\nv_add_u32 v{vT1}, s{sSTG}, v{vT1}")
    for k in range(4):
        a(f"v_xor_b32 v{vXA+k}, {32*k}, v{vT1}")
    a(f"v_lshlrev_b32 v{vT4}, 2, v{vL}\nv_mul_u32_u24 v{vT3}, {CAPB}, v{vL}\nv_add_u32 v{vT3}, {LIST}, v{vT3}")
    a("s_waitcnt lgkmcnt(0)\ns_barrier")
    stamp()
    vK, vNP, vSC = 8, 9, 10
    a(f"ds_read_b32 v{vK}, v{vT4} offset:{CNT}")
    a(f"v_cmp_gt_u32 vcc, {NPB}, v{vL}\ns_mul_i32 s{sA}, s{sWV}, {4*L}\ns_waitcnt lgkmcnt(0)")
    a(f"v_sub_u32 v{vK}, v{vK}, v{vT3}\nv_cndmask_b32 v{vK}, 0, v{vK}, vcc")
    a(f"v_add_u32 v{vNP}, {4*(L-1)}, v{vK}\nv_mul_u32_u24 v{vNP}, 4370, v{vNP}\nv_lshrrev_b32 v{vNP}, 18, v{vNP}")
    a(f"v_mov_b32 v{vSC}, v{vNP}\nv_cmp_lt_u32 vcc, {CAPB}, v{vK}")
    wave_scan(a, vSC)
    a(f"v_subrev_u32 v{vK}, s{sA}, v{vK}\nv_add_u32 v{vT3}, s{sA}, v{vT3}")
    a(f"v_readlane_b32 s{sB}, v{vSC}, 63")
    a(f"v_min_i32 v{vK}, {4*L}, v{vK}\nv_lshl_or_b32 v{vT3}, v{vL}, 24, v{vT3}\nv_lshl_or_b32 v{vT3}, v{vK}, 14, v{vT3}")
    a("s_cbranch_vccnz K2_RETRY")
    a(f"s_cmp_gt_u32 s{sB}, 256\ns_cbranch_scc1 K2_RETRY")
    a(f"v_sub_u32 v{vT0}, v{vSC}, v{vNP}\nv_cmp_lt_u32 vcc, s{sWV}, v{vNP}")
    a(f"v_add_lshl_u32 v{vT2}, v{vT0}, s{sWV}, 2\nv_lshl_or_b32 v{vT0}, v{vSC}, 16, v{vT0}")
    a(f"s_mov_b64 exec, vcc\nds_write_b32 v{vT2}, v{vT3} offset:{PTAB}\ns_mov_b64 exec, -1")
    a(f"v_lshrrev_b32 v{vT2}, 5, v{vOA}\nv_and_b32 v{vT2}, 0xfc, v{vT2}\nds_bpermute_b32 v{vPBE}, v{vT2}, v{vT0}")
    a(f"s_lshl_b32 s{sA}, s{sWV}, 7")
    a(f"v_and_b32 v{vT2}, 31, v{vL}\nv_lshl_add_u32 v{vT2}, v{vT2}, 2, s{sA}")
    a(f"v_lshrrev_b32 v{vT3}, 3, v{vL}\nv_lshl_add_u32 v{vT3}, v{vT3}, 4, s{sA}")
    a("s_waitcnt vmcnt(0) lgkmcnt(0)\ns_barrier")
    stamp()
    a(f"ds_read_b128 {vr(vPA,4)}, v{vT3} offset:{PTAB}\nds_read_b32 v{vT4}, v{vT2} offset:{PTAB}")
    a(f"v_lshrrev_b32 v{vT1}, 5, v{vL}\nv_lshlrev_b32 v{vT1}, 4, v{vT1}\nv_add_u32 v{vT1}, {QB}, v{vT1}")
    a(f"s_movk_i32 s{sA}, {QSTR}\ns_waitcnt lgkmcnt(1)")
    for j in range(4):
        a(f"v_and_b32 v{vPA+j}, 0xffff, v{vPA+j}\nds_read_u16 v{vIDX+2*j}, v{vPA+j}")
    a("s_waitcnt lgkmcnt(4)")
    a(f"v_and_b32 v{vPO}, 0xffff, v{vT4}\nv_lshrrev_b32 v{vT2}, 24, v{vT4}\nv_mad_u32_u24 v{vT1}, v{vT2}, s{sA}, v{vT1}")
    a(f"ds_read_u16 v{vEAD}, v{vPO} offset:2\nv_bfe_u32 v{vLEN}, v{vT4}, 16, 8")
    a("s_waitcnt lgkmcnt(1)")
    dma(a, 0)
    idx_reads(a, 1)
    for k in range(8):
        a(f"ds_read_b128 {vr(vQ+4*k,4)}, v{vT1} offset:{32*k}")
    for t in range(1, L):
        a(f"v_cmp_lt_u32 {mask(t)}, {t}, v{vLEN}")
    a("s_waitcnt lgkmcnt(0)\ns_barrier")
    dma(a, 1)
    a(f"ds_read_b64 {vr(vEV,2)}, v{vEAD} offset:{EAI}")
    idx_reads(a, 2)
    a(f"ds_read_u16 v{vEAD}, v{vPO} offset:6")
    a(f"v_cndmask_b32 v{vPBE}, 0, v{vPBE}, {sr(sVAL,2)}\nv_mov_b32 v{vCHK}, 0\ns_nop 0")
    a(f"v_readfirstlane_b32 s{sKB}, v{vPBE}\nv_readlane_b32 s{sA}, v{vPBE}, 11\nv_readlane_b32 s{sB}, v{vPBE}, 12")
    a(f"s_bfe_u32 s{sKB}, s{sKB}, 0xb0005\ns_min_u32 s{sKB}, s{sKB}, 4\ns_max_u32 s{sA}, s{sA}, s{sB}\ns_lshr_b32 s{sA}, s{sA}, 16")
    a(f"s_lshl_b32 s{sB}, s{sKB}, 5\ns_add_u32 s{sB}, s{sB}, 128\ns_cmp_gt_u32 s{sA}, s{sB}")
    a(f"s_cselect_b32 s{sNP}, 2, 1\ns_cselect_b32 s{sKB}, 0, s{sKB}")
    s_lut_reads(a)
    a(f"v_and_b32 v{vT0}, 7, v{vL}\nv_bfe_u32 v{vT1}, v{vL}, 3, 1\nv_lshlrev_b32 v{vT1}, 2, v{vT1}\nv_xor_b32 v{vT0}, v{vT0}, v{vT1}")
    a(f"v_lshrrev_b32 v{vT1}, 5, v{vL}\nv_lshlrev_b32 v{vT1}, 1, v{vT1}\nv_xor_b32 v{vT0}, v{vT0}, v{vT1}\nv_lshlrev_b32 v{vT0}, 4, v{vT0}")
    a(f"v_and_b32 v{vT1}, 31, v{vL}\nv_lshl_add_u32 v{vT0}, v{vT1}, 7, v{vT0}\nv_add_u32 v{vT0}, s{sSTG}, v{vT0}")
    for m in range(2):
        for u in range(2):
            a(f"v_xor_b32 v{vPW+2*m+u}, {64*m+16*u}, v{vT0}")
    a(f"v_bfe_u32 v{vT0}, v{vL}, 2, 2\nv_bfe_u32 v{vT1}, v{vL}, 1, 1\nv_xor_b32 v{vT1}, v{vT0}, v{vT1}")
    a(f"v_bfe_u32 v{vT2}, v{vL}, 4, 1\nv_lshl_or_b32 v{vT1}, v{vT2}, 2, v{vT1}\nv_lshlrev_b32 v{vT1}, 4, v{vT1}")
    a(f"v_and_b32 v{vT2}, 1, v{vL}\nv_lshl_or_b32 v{vT1}, v{vT2}, 3, v{vT1}")
    a(f"v_lshrrev_b32 v{vT2}, 4, v{vL}\nv_lshl_add_u32 v{vT0}, v{vT2}, 3, v{vT0}\nv_lshl_add_u32 v{vT0}, v{vT0}, 7, v{vT1}")
    a(f"s_lshl_b32 s{sA}, s{sKB}, 12\ns_add_u32 s{sA}, s{sA}, {STG}\nv_add_u32 v{vT0}, s{sA}, v{vT0}")
    for k in range(4):
        a(f"v_xor_b32 v{vTR+k}, {32*k}, v{vT0}")
    a(f"s_cmp_lg_u32 s{sSAFE}, 0\ns_cbranch_scc1 K2_SAFE")
    a("s_waitcnt vmcnt(4)")
    stamp()
    x_reads(a, 0, 0)
    x_reads(a, 0, 1)
    a("s_waitcnt lgkmcnt(2)")
    for e in mfma_group(0, 0):
        a(e)
    a("s_nop 7")
    roles = opt.get("roles", "AB")
    a(f"s_cmp_ge_u32 s{sWV}, 4\ns_cbranch_scc1 K2_MAINB")
    main_loop(a, "A")
    a("s_branch K2_FLUSHED\nK2_MAINB:")
    main_loop(a, "B")
    a("K2_FLUSHED:")
    a(f"v_cmp_ngt_f32 vcc, {f32bits(2.0**90):#x}, v{vCHK}\ns_cbranch_vccz K2_JOIN")
    a(f"v_mov_b32 v{vT1}, 0\nds_write_b32 v{vT1}, v{vT1} offset:{FLG_NUM}")
    a("K2_JOIN:")
    stamp()
    a(f"v_mov_b32 v{vT1}, 0\ns_waitcnt lgkmcnt(0)\ns_barrier")
    vFL = 36
    a(f"ds_read_b64 {vr(vFL,2)}, v{vT1} offset:{FLG_MORE}")
    a(f"s_cmp_ge_u32 s{sWV}, 4\ns_cbranch_scc1 K2_NEXT")
    vR, vAG, vBO = 40, 8, 24
    a("K2_TAIL:")
    for k in range(4):
        for m in range(2):
            for h in range(2):
                for u in range(2):
                    d = vR + 16 * k + 4 * (2 * m + h) + 2 * u
                    a(f"ds_read_b64_tr_b16 {vr(d,2)}, v{vTR + 2*(m^u) + h} offset:{4096*k + 512*u}")
        if k == 1:
            a("s_waitcnt lgkmcnt(8)")
            a(f"v_readfirstlane_b32 s{sB}, v{vFL+1}")
        if k >= 1:
            if k > 1:
                a("s_waitcnt lgkmcnt(8)")
            for t in range(4):
                c = "0" if k == 1 else vr(vAG + 4 * t, 4)
                a(f"v_mfma_f32_16x16x32_bf16 {vr(vAG+4*t,4)}, {vr(vR+16*(k-1)+4*t,4)}, {vr(vS+4*(k-1),4)}, {c}")
    a("s_waitcnt lgkmcnt(0)")
    for t in range(4):
        a(f"v_mfma_f32_16x16x32_bf16 {vr(vAG+4*t,4)}, {vr(vR+48+4*t,4)}, {vr(vS+12,4)}, {vr(vAG+4*t,4)}")
    a(f"s_cmp_eq_u32 s{sB}, 0\ns_cbranch_scc1 K2_NEXT\ns_nop 2")
    for i in range(8):
        a(f"v_cvt_pk_bf16_f32 v{vBO+i}, v{vAG+2*i}, v{vAG+2*i+1}")
    a("s_nop 1")
    small_mfma(a, vU, vQ, vBO, cinit=True)
    a(f"s_cmp_eq_u32 s{sNP}, 2\ns_cbranch_scc0 K2_NEXT")
    a(f"s_mov_b32 s{sNP}, 1\ns_mov_b32 s{sKB}, 4")
    s_lut_reads(a)
    for k in range(4):
        a(f"v_add_u32 v{vTR+k}, 16384, v{vTR+k}")
    a("s_waitcnt lgkmcnt(0)\ns_branch K2_TAIL")
    a("K2_NEXT:\ns_waitcnt lgkmcnt(0)")
    a(f"v_readfirstlane_b32 s{sA}, v{vFL}\nv_readfirstlane_b32 s{sB}, v{vFL+1}")
    a(f"s_add_u32 s{sC}, s{sG0}, s{sGG}")
    a(f"s_cmp_eq_u32 s{sB}, 0\ns_cbranch_scc1 K2_TOSAFE")
    a(f"s_mov_b32 s{sFIRST}, 0\ns_mov_b32 s{sG0}, s{sC}\ns_cmp_lt_u32 s{sC}, 256\ns_cbranch_scc1 K2_AGAIN")
    a(f"s_mov_b32 s{sG0}, 0\ns_add_u32 s{sRND}, s{sRND}, 128\ns_cmp_eq_u32 s{sA}, 0\ns_cbranch_scc1 K2_AGAIN")
    a(f"s_cmp_ge_u32 s{sWV}, 4\ns_cbranch_scc1 K2_END")
    vZ = 40
    a(f"v_mov_b32 v{vT1}, {f32bits(-LOG2E):#x}")
    for mh in range(2):
        for i in range(8 * mh, 8 * mh + 8):
            a(f"v_exp_f32 v{vZ+i}, v{vU+i}")
        for i in range(8 * mh, 8 * mh + 8):
            a(f"v_fma_f32 v{vZ+i}, v{vZ+i}, v{vT1}, v{vT1}")
        for i in range(8 * mh, 8 * mh + 8):
            a(f"v_rcp_f32 v{vZ+i}, v{vZ+i}")
        for i in range(8 * mh, 8 * mh + 8):
            a(f"v_mul_f32 v{vZ+i}, v{vZ+i}, v{vU+i}")
        for i in range(4 * mh, 4 * mh + 4):
            a(f"v_cvt_pk_bf16_f32 v{vBO+i}, v{vZ+2*i}, v{vZ+2*i+1}")
        a(f"s_mov_b64 exec, {sr(sVAL,2)}")
        a(f"buffer_store_dwordx4 {vr(vBO+4*mh,4)}, v{vOA}, {sr(sO,4)}, 0 offen offset:{64*mh}")
    if opt.get("stamp"):
        a("s_mov_b64 exec, -1")
        stamp()
        a("s_waitcnt vmcnt(0)")
        stamp()
        a(f"s_lshl_b32 s{sA}, s2, 2\ns_add_u32 s{sA}, s{sA}, s{sWV}\ns_lshl_b32 s{sA}, s{sA}, 7\ns_add_u32 s{sA}, s{sA}, {WS_DBG + 65536}")
        srd(a, sX, 14, f"s{sA}", 128)
        a(f"v_lshlrev_b32 v2, 2, v{vL}\nbuffer_store_dword v3, v2, {sr(sX,4)}, 0 offen")
    a("K2_END:\ns_endpgm")
    a(f"K2_RETRY:\ns_lshr_b32 s{sGG}, s{sGG}, 1\ns_cbranch_scc0 K2_END\ns_branch K2_AGAIN")
    a(f"K2_TOSAFE:\ns_mov_b32 s{sSAFE}, 1")
    a("K2_AGAIN:\ns_waitcnt vmcnt(0) lgkmcnt(0)\ns_barrier")
    a(f"v_lshrrev_b32 v{vT1}, 3, v0\nv_lshlrev_b32 v{vT1}, 4, v{vT1}\nv_lshlrev_b32 v{vO16}, 4, v0\ns_branch K2_ROUND")
    a("K2_SAFE:")
    safe_loop(a)
    a("s_branch K2_JOIN")
    return a.text(), kd(name, 256, 102)
```

```python
from asmlib import *
from common import *
from k1 import wtr_addr, wtr_reads, small_mfma
import k2
from k2 import *

HIST, BASE, W0S, W1I, EIN = EAI, EAI + 1024, EAI + 2048, EAI + 18432, EAI + 26624
EZERO = 7 * 8192 + 3 * 2048 + 7 * 128
WS_EPOCH = WS_TBL + (1 << 19)
NEG_L2E = f"{f32bits(-LOG2E):#x}"
sTAG, sNV = 89, 95
vO16, vPOS, vXB = 2, vS, 108

def lds_init(a):
    z = 40
    a(f"v_subrev_u32 v{vT0}, 80, v0\nv_mul_u32_u24 v{vT3}, 57, v{vT0}\nv_lshrrev_b32 v{vT3}, 9, v{vT3}")
    a(f"v_mad_i32_i24 v{vT4}, v{vT3}, -10, v{vT0}\nv_max_i32 v{vT4}, 0, v{vT4}\nv_bfm_b32 v{vT4}, v{vT4}, v{vT3}")
    a(f"s_mov_b32 s{sA}, 0x3f800000")
    for d in range(4):
        a(f"v_mov_b32 v{z+4+d}, {EZERO << 16:#x}\nv_mov_b32 v{z+d}, {EZERO << 16:#x}")
    a(f"ds_write_b128 v{vO16}, {vr(z+4,4)} offset:8192\nds_write_b128 v{vO16}, {vr(z+4,4)} offset:16384")
    a(f"v_cmp_gt_u32 vcc, 161, v0\ns_mov_b64 exec, vcc")
    for d in range(4):
        a(f"v_bfe_i32 v{z+d}, v{vT4}, {2*d}, 1\nv_bfe_i32 v{vT3}, v{vT4}, {2*d+1}, 1")
        a(f"v_and_b32 v{z+d}, 0x3f80, v{z+d}\nv_and_or_b32 v{z+d}, v{vT3}, s{sA}, v{z+d}")
    a(f"v_cmp_gt_u32 vcc, 80, v0\ns_mov_b64 exec, vcc")
    for d in range(4):
        a(f"v_mov_b32 v{z+d}, {LIST}")
    a(f"v_cmp_gt_u32 vcc, 16, v0\ns_mov_b64 exec, vcc\nv_mul_u32_u24 v{vT3}, {4*CAPB}, v0")
    for d in range(4):
        a(f"v_add_u32 v{z+d}, {LIST + CAPB*d}, v{vT3}")
    a("s_mov_b64 exec, -1")
    a(f"ds_write_b128 v{vO16}, {vr(z,4)}")
    a(f"v_mov_b32 v{vT3}, {EAI + EZERO}\nv_mov_b32 v{z+8}, 0\nv_mov_b32 v{z+9}, 0\nds_write_b64 v{vT3}, {vr(z+8,2)}")

def pos_consts(a):
    a(f"s_lshl_b32 s{sB}, s{sWV}, 13")
    a(f"v_and_b32 v{vT1}, 3, v0\nv_lshlrev_b32 v{vT1}, 5, v{vT1}\nv_bfe_u32 v{vT3}, v0, 2, 1\nv_lshl_add_u32 v{vT1}, v{vT3}, 10, v{vT1}")
    a(f"v_lshrrev_b32 v{vT3}, 3, v{vL}\nv_lshl_add_u32 v{vT1}, v{vT3}, 7, v{vT1}\nv_add_u32 v{vT1}, s{sB}, v{vT1}\nv_lshlrev_b32 v{vT1}, 16, v{vT1}")
    for q in range(4):
        for r in range(4):
            a(f"v_add_u32 v{vPOS+4*q+r}, {(2048*q+8*r) << 16:#x}, v{vT1}")

def loop_consts(a):
    a(f"v_and_b32 v{vT2}, 31, v{vL}\nv_lshrrev_b32 v{vT3}, 5, v{vL}\nv_lshlrev_b32 v{vT4}, 3, v{vT3}\nv_sub_u32 v{vT4}, v{vT2}, v{vT4}")
    a(f"v_and_b32 v{vT1}, 1, v{vL}\nv_lshlrev_b32 v{vT1}, 4, v{vT1}\ns_movk_i32 s{sA}, 0x3f80\nv_lshlrev_b32 v{vT1}, v{vT1}, s{sA}")
    a(f"v_ashrrev_i32 v{vT4}, 1, v{vT4}")
    for s in range(2):
        for d in range(4):
            a(f"v_cmp_eq_u32 vcc, {8*s+d}, v{vT4}\ns_nop 1\nv_cndmask_b32 v{vSEL+4*s+d}, 0, v{vT1}, vcc")
    a(f"s_lshl_b32 s{sSTG}, s{sWV}, 12\ns_add_u32 s{sSTG}, s{sSTG}, {STG}")
    a(f"v_lshrrev_b32 v{vT1}, 3, v{vL}\nv_and_b32 v{vT1}, 4, v{vT1}\nv_and_b32 v{vT2}, 7, v{vL}\nv_xor_b32 v{vT1}, v{vT1}, v{vT2}\nv_lshlrev_b32 v{vT1}, 4, v{vT1}")
    for j in range(4):
        a(f"v_xor_b32 v{vIDX+2*j+1}, {16*j + 1024*(3-j)}, v{vT1}")
    a(f"v_and_b32 v{vT1}, 3, v{vL}\nv_bfe_u32 v{vT2}, v{vL}, 2, 3\nv_lshl_add_u32 v{vT3}, v{vT1}, 3, v{vT2}")
    a(f"v_and_or_b32 v{vT1}, v{vT2}, 4, v{vT1}\nv_lshrrev_b32 v{vT2}, 5, v{vL}\nv_xor_b32 v{vT1}, v{vT1}, v{vT2}")
    a(f"v_lshlrev_b32 v{vT1}, 4, v{vT1}\nv_lshl_add_u32 v{vT1}, v{vT3}, 7, v{vT1}\nv_add_u32 v{vT1}, s{sSTG}, v{vT1}")
    for k in range(4):
        a(f"v_xor_b32 v{vXA+k}, {32*k}, v{vT1}")
    a(f"v_and_b32 v{vT0}, 7, v{vL}\nv_bfe_u32 v{vT1}, v{vL}, 3, 1\nv_lshlrev_b32 v{vT1}, 2, v{vT1}\nv_xor_b32 v{vT0}, v{vT0}, v{vT1}")
    a(f"v_lshrrev_b32 v{vT1}, 5, v{vL}\nv_lshlrev_b32 v{vT1}, 1, v{vT1}\nv_xor_b32 v{vT0}, v{vT0}, v{vT1}\nv_lshlrev_b32 v{vT0}, 4, v{vT0}")
    a(f"v_and_b32 v{vT1}, 31, v{vL}\nv_lshl_add_u32 v{vT0}, v{vT1}, 7, v{vT0}\nv_add_u32 v{vT0}, s{sSTG}, v{vT0}")
    for m in range(2):
        for u in range(2):
            a(f"v_xor_b32 v{vPW+2*m+u}, {64*m+16*u}, v{vT0}")
    wtr_addr(a, vWA, vL, vT1, vT2)
    a(f"v_add_u32 v{vWA}, {W5I}, v{vWA}")

def tr_consts(a):
    a(f"v_bfe_u32 v{vT0}, v{vL}, 2, 2\nv_bfe_u32 v{vT1}, v{vL}, 1, 1\nv_xor_b32 v{vT1}, v{vT0}, v{vT1}")
    a(f"v_bfe_u32 v{vT2}, v{vL}, 4, 1\nv_lshl_or_b32 v{vT1}, v{vT2}, 2, v{vT1}\nv_lshlrev_b32 v{vT1}, 4, v{vT1}")
    a(f"v_and_b32 v{vT2}, 1, v{vL}\nv_lshl_or_b32 v{vT1}, v{vT2}, 3, v{vT1}")
    a(f"v_lshrrev_b32 v{vT2}, 4, v{vL}\nv_lshl_add_u32 v{vT0}, v{vT2}, 3, v{vT0}\nv_lshl_add_u32 v{vT0}, v{vT0}, 7, v{vT1}")
    a(f"s_lshl_b32 s{sA}, s{sKB}, 12\ns_add_u32 s{sA}, s{sA}, {STG}\nv_add_u32 v{vT0}, s{sA}, v{vT0}")
    for k in range(4):
        a(f"v_xor_b32 v{vTR+k}, {32*k}, v{vT0}")

def node_gemm(a, img):
    a(f"v_add_u32 v{vT1}, {img}, v{vWA}")
    wtr_reads(a, vQ, vT1, 0)
    a("s_waitcnt lgkmcnt(0)")
    small_mfma(a, vX, vQ, vXB)

def q_store(a):
    for i in range(16):
        a(f"v_mul_f32 v{vX+i}, {NEG_L2E}, v{vX+i}")
    a(f"v_lshrrev_b32 v{vT1}, 7, v{vOA}\nv_mul_u32_u24 v{vT1}, {QSTR}, v{vT1}\nv_and_b32 v{vT2}, 48, v{vL}")
    a(f"v_lshl_add_u32 v{vT1}, v{vT2}, 1, v{vT1}\nv_add_u32 v{vT1}, {QB}, v{vT1}")
    for k in range(4):
        a(f"ds_write_b128 v{vT1}, {vr(vX+4*k,4)} offset:{128*(k>>1)+16*(k&1)}")

def rel(x):
    return f"{(x - W5I) & 0xffffffff:#x}"

def gen_k3(name, opt):
    a = Asm()
    nst = [0]
    NT = " nt" if opt.get("nt", 1) else ""
    ST = {0: "", 1: " sc1", 2: " sc1 nt", 3: " sc0 sc1"}[opt.get("st", 1)]
    LD = {0: "", 1: " sc1", 2: " sc1 nt", 3: " sc0 sc1"}[opt.get("ld", 1)]
    k2.GATHER = {0: "", 1: " sc1"}[opt.get("gl", 1)]
    def stamp():
        if opt.get("stamp"):
            a(f"s_memrealtime s[96:97]\ns_memtime s[98:99]\ns_waitcnt lgkmcnt(0)\nv_writelane_b32 v3, s96, {nst[0]}\nv_writelane_b32 v3, s98, {16+nst[0]}")
            nst[0] += 1
    sD, sS, sE, sOW, sOE, sTO, sPO = 48, 52, 56, 60, 64, 68, 72
    mA, mB, s8K = 76, 78, 100
    vD, vS1, vB4, vRK, vLOC = 8, 16, 24, 32, 52
    vH, vBS, vSC, vFour, vTE, vGR = 60, 64, 68, 69, 70, 72
    a(f".p2align 8\n.globl {name}\n.type {name},@function\n{name}:")
    a("s_cmp_ge_u32 s2, 256\ns_cbranch_scc1 K_END")
    a("s_load_dwordx8 s[4:11], s[0:1], 0\ns_load_dwordx2 s[14:15], s[0:1], 64\ns_load_dwordx4 s[40:43], s[0:1], 32\ns_load_dwordx2 s[12:13], s[0:1], 48")
    a("s_lshr_b32 s3, s2, 3\ns_and_b32 s2, s2, 7\ns_lshl_b32 s2, s2, 5\ns_add_u32 s2, s2, s3")
    a(f"v_lshrrev_b32 v{vT0}, 6, v0\nv_and_b32 v{vL}, 63, v0\nv_lshlrev_b32 v{vO16}, 4, v0")
    a(f"v_readfirstlane_b32 s{sWV}, v{vT0}")
    a(f"s_mul_i32 s{sA}, s2, {CH}\ns_min_u32 s{sA}, s{sA}, {E}")
    a(f"s_sub_u32 s{sNV}, {E}, s{sA}\ns_min_u32 s{sNV}, s{sNV}, {CH}")
    a(f"s_lshl_b32 s{sA}, s{sA}, 2\ns_lshl_b32 s{sB}, s{sNV}, 2\ns_mov_b32 s{s8K}, 8192")
    a(f"v_lshlrev_b32 v{vT0}, 2, v0\nv_mov_b32 v{vT1}, 0\nds_write_b32 v{vT0}, v{vT1} offset:{HIST}")
    if opt.get("stamp"):
        a("v_mov_b32 v3, 0")
    stamp()
    a("s_waitcnt lgkmcnt(0)")
    srd(a, sD, 10, f"s{sA}", f"s{sB}")
    a(f"buffer_load_dwordx4 {vr(vD,4)}, v{vO16}, {sr(sD,4)}, 0 offen{NT}")
    a(f"buffer_load_dwordx4 {vr(vD+4,4)}, v{vO16}, {sr(sD,4)}, s{s8K} offen{NT}")
    a(f"s_add_u32 s{sT}, s14, {WS_EPOCH}\ns_addc_u32 s{sT+1}, s15, 0\ns_load_dword s{sTAG}, {sr(sT,2)}, 0")
    srd(a, sS, 8, f"s{sA}", f"s{sB}")
    a(f"s_mul_i32 s{sC}, s2, {CSTR*4}")
    srd(a, sOW, 14, f"s{sC}", f"s{sB}")
    a(f"s_lshl_b32 s{sA}, s{sA}, 1\ns_lshl_b32 s{sB}, s{sB}, 1")
    srd(a, sE, 6, f"s{sA}", f"s{sB}")
    a(f"s_lshl_b32 s{sC}, s{sC}, 1\ns_add_u32 s{sC}, s{sC}, {WS_EA}")
    srd(a, sOE, 14, f"s{sC}", f"s{sB}")
    a(f"s_mul_i32 s{sA}, s2, {NPB*128}\ns_sub_u32 s{sB}, {N*128}, s{sA}")
    srd(a, sX, 4, f"s{sA}", f"s{sB}")
    a(f"s_min_u32 s{sB}, s{sB}, {NPB*128}")
    srd(a, sO, 12, f"s{sA}", f"s{sB}")
    a(f"s_add_u32 s{sA}, s{sA}, {WS_P}")
    srd(a, sPO, 14, f"s{sA}", f"s{sB}")
    srd(a, sWU, 42, None, 16384)
    a(f"s_mov_b32 s{sWM+2}, 16896\ns_mov_b32 s{sWM+3}, 0x00020000")
    a(f"s_and_b32 s{sA}, s{sWV}, 3\ns_min_u32 s{sB}, s{sA}, 1\ns_mul_i32 s{sA}, s{sA}, 12\ns_add_u32 s{sA}, s{sA}, s{sB}")
    a(f"s_sub_u32 s{sB}, 13, s{sB}")
    a(f"v_and_b32 v{vT2}, 15, v{vL}\nv_cmp_gt_u32 {sr(sVAL,2)}, s{sB}, v{vT2}\nv_add_u32 v{vT2}, s{sA}, v{vT2}")
    a(f"v_and_b32 v{vT3}, 48, v{vL}\nv_lshl_add_u32 v{vOA}, v{vT2}, 7, v{vT3}")
    a(f"s_lshl_b32 s{sB}, s{sWV}, 10")
    a("s_barrier")
    a(f"buffer_load_dwordx4 {vr(vS1,4)}, v{vO16}, {sr(sS,4)}, 0 offen{NT}")
    a(f"buffer_load_dwordx4 {vr(vS1+4,4)}, v{vO16}, {sr(sS,4)}, s{s8K} offen{NT}")
    a(f"s_add_u32 m0, s{sB}, {W1I}")
    a(f"buffer_load_dwordx4 {vr(vXB,4)}, v{vOA}, {sr(sX,4)}, 0 offen")
    a(f"buffer_load_dwordx4 {vr(vXB+4,4)}, v{vOA}, {sr(sX,4)}, 0 offen offset:64")
    a(f"buffer_load_dwordx4 v{vO16}, {sr(sWM,4)}, 0 offen lds")
    for k in range(4):
        a(f"s_add_u32 m0, s{sB}, {EIN + 8192*k}\ns_mov_b32 s{sA}, {8192*k}")
        a(f"buffer_load_dwordx4 v{vO16}, {sr(sE,4)}, s{sA} offen{NT} lds")
    def w_loads(first):
        a(f"s_add_u32 m0, s{sB}, {W2I}\nv_lshlrev_b32 v{vT0}, 2, v0")
        a(f"buffer_load_dwordx4 v{vO16}, {sr(sWM,4)}, s{s8K} offen lds")
        if first:
            a(f"s_add_u32 m0, s{sB}, {W4I}\ns_lshl_b32 s{sA}, s{sWV}, 8")
            a(f"buffer_load_dwordx4 v{vO16}, {sr(sWU,4)}, 0 offen lds")
            a(f"s_add_u32 m0, s{sA}, {W3I}\ns_mov_b32 s{sA}, 16384")
            a(f"buffer_load_dword v{vT0}, {sr(sWM,4)}, s{sA} offen lds")
            a(f"s_add_u32 m0, s{sB}, {W5I}\ns_nop 0")
            a(f"buffer_load_dwordx4 v{vO16}, {sr(sWU,4)}, s{s8K} offen lds")
    w_loads(True)
    NY = 13
    a(f"v_mov_b32 v{vFour}, 4\nv_lshlrev_b32 v{vTE}, 22, v0")
    a(f"s_lshr_b32 s{sA}, s{sNV}, 2\nv_cmp_gt_u32 {sr(mA,2)}, s{sA}, v0")
    a(f"v_add_u32 v{vT0}, 512, v0\nv_cmp_gt_u32 {sr(mB,2)}, s{sA}, v{vT0}")
    lds_init(a)
    a(f"s_lshl_b32 s{sA}, s2, 3\ns_add_u32 s{sA}, s{sA}, {WS_TBL}")
    srd(a, sTO, 14, f"s{sA}", 256 * 2048)
    a(f"s_lshl_b32 s{sA}, s2, 11\ns_add_u32 s{sA}, s{sA}, {WS_TBL}")
    srd(a, sT, 14, f"s{sA}", 2048)
    srd(a, sP, 14, WS_P - 3072, N, stride=128)
    srd(a, sW0, 14, WS_W0, 256 * CSTR * 4)
    srd(a, sEA, 14, WS_EA, 256 * CSTR * 8)
    a(f"s_mov_b32 s{sRND}, 0\ns_mov_b32 s{sG0}, 0\ns_mov_b32 s{sGG}, {opt.get('force_gg', 256)}\ns_mov_b32 s{sSAFE}, {1 if opt.get('force_safe') else 0}")
    a(f"s_movk_i32 s{sC}, -49")
    a(f"s_waitcnt vmcnt({NY}) lgkmcnt(0)")
    stamp()
    a(f"s_mul_i32 s{sTAG}, s{sTAG}, 0x9e3779b1\ns_add_u32 s{sTAG}, s{sTAG}, 0x7f4a7c15")
    for half, m in ((0, mA), (1, mB)):
        a(f"s_mov_b64 exec, {sr(m,2)}")
        if half:
            a("s_cbranch_execz K_H1")
        for r in range(4 * half, 4 * half + 4):
            a(f"v_mul_u32_u24 v{vB4+r}, {MAGIC49}, v{vD+r}")
            a(f"v_lshrrev_b32 v{vB4+r}, {SH49}, v{vB4+r}")
            a(f"v_mad_i32_i24 v{vLOC+r}, v{vB4+r}, s{sC}, v{vD+r}")
            a(f"v_lshlrev_b32 v{vB4+r}, 2, v{vB4+r}")
            a(f"ds_add_rtn_u32 v{vRK+r}, v{vB4+r}, v{vFour} offset:{HIST}")
    a("K_H1:\ns_mov_b64 exec, -1")
    a(f"v_lshlrev_b32 v{vT0}, 4, v{vL}")
    a("s_waitcnt lgkmcnt(0)\ns_barrier")
    a(f"ds_read_b128 {vr(vH,4)}, v{vT0} offset:{HIST}\ns_waitcnt lgkmcnt(0)")
    a(f"v_add_u32 v{vBS+1}, v{vH}, v{vH+1}\nv_add3_u32 v{vSC}, v{vBS+1}, v{vH+2}, v{vH+3}\nv_mov_b32 v{vT1}, v{vSC}")
    wave_scan(a, vSC)
    a(f"v_sub_u32 v{vBS}, v{vSC}, v{vT1}\nv_add_u32 v{vBS+2}, v{vBS}, v{vBS+1}\nv_add_u32 v{vBS+1}, v{vBS}, v{vH}")
    a(f"v_add_u32 v{vBS+3}, v{vBS+2}, v{vH+2}")
    a(f"ds_write_b128 v{vT0}, {vr(vBS,4)} offset:{BASE}")
    for half, m in ((0, mA), (1, mB)):
        a(f"s_mov_b64 exec, {sr(m,2)}")
        for r in range(4 * half, 4 * half + 4):
            a(f"ds_read_b32 v{vB4+r}, v{vB4+r} offset:{BASE}")
    a("s_mov_b64 exec, -1")
    for i in range(4):
        a(f"v_lshl_or_b32 v{vGR+2*i}, v{vH+i}, 16, v{vBS+i}\nv_mov_b32 v{vGR+2*i+1}, s{sTAG}")
    a(f"s_waitcnt vmcnt({NY-2})")
    for r in range(8):
        a(f"s_mov_b32 s{sA}, {((r & 3) << 20) | ((r >> 2) << 31):#x}")
        a(f"v_lshl_or_b32 v{vS1+r}, v{vLOC+r}, 14, v{vS1+r}")
        a(f"v_or3_b32 v{vS1+r}, v{vS1+r}, v{vTE}, s{sA}")
    a("s_waitcnt lgkmcnt(0)")
    for half, m in ((0, mA), (1, mB)):
        a(f"s_mov_b64 exec, {sr(m,2)}")
        if half:
            a("s_cbranch_execz K_H2")
        for r in range(4 * half, 4 * half + 4):
            a(f"v_add_u32 v{vRK+r}, v{vRK+r}, v{vB4+r}")
            a(f"ds_write_b32 v{vRK+r}, v{vS1+r} offset:{W0S}")
    a("K_H2:\ns_mov_b64 exec, -1")
    wtr_addr(a, vWA, vL, vT1, vT2)
    a(f"v_add_u32 v{vWA}, {W5I}, v{vWA}\nv_lshlrev_b32 v{vT0}, 3, v0")
    a(f"s_waitcnt vmcnt({NY-5}) lgkmcnt(0)\ns_barrier")
    stamp()
    vQQ, vPR, vEA1, vG = vD, vB4, vRK, 80
    a(f"ds_read_b128 {vr(vQQ,4)}, v{vO16} offset:{W0S}\nds_read_b128 {vr(vQQ+4,4)}, v{vO16} offset:{W0S+8192}")
    for i in range(4):
        a(f"ds_read_b64 {vr(vPR+2*i,2)}, v{vT0} offset:{W0S+4096*i}")
    a("s_waitcnt lgkmcnt(4)")
    a(f"buffer_store_dwordx4 {vr(vQQ,4)}, v{vO16}, {sr(sOW,4)}, 0 offen{ST}")
    a(f"buffer_store_dwordx4 {vr(vQQ+4,4)}, v{vO16}, {sr(sOW,4)}, s{s8K} offen{ST}")
    a("s_waitcnt lgkmcnt(0)")
    for i in range(8):
        a(f"v_lshrrev_b32 v{vEA1+i}, 17, v{vPR+i}\nv_and_b32 v{vEA1+i}, 0x7ff8, v{vEA1+i}")
    a(f"s_cmp_ge_u32 s{sWV}, 4\ns_cbranch_scc1 K_PG")
    a("s_waitcnt vmcnt(6)\ns_branch K_EO\nK_PG:")
    node_gemm(a, rel(W1I))
    a("s_nop 7")
    for i in range(16):
        a(f"v_mul_f32 v{vX+i}, {NEG_L2E}, v{vX+i}")
    for i in range(8):
        a(f"v_cvt_pk_bf16_f32 v{vQ+i}, v{vX+2*i}, v{vX+2*i+1}")
    a(f"s_mov_b64 exec, {sr(sVAL,2)}")
    a(f"buffer_store_dwordx4 {vr(vQ,4)}, v{vOA}, {sr(sPO,4)}, 0 offen{ST}")
    a(f"buffer_store_dwordx4 {vr(vQ+4,4)}, v{vOA}, {sr(sPO,4)}, 0 offen offset:64{ST}")
    a("s_mov_b64 exec, -1\ns_waitcnt vmcnt(8)\nK_EO:\ns_barrier")
    stamp()
    for i in range(6):
        a(f"ds_read_b64 {vr(vG+2*i,2)}, v{vEA1+i} offset:{EIN}")
    for i in range(3):
        a(f"s_mov_b32 s{sA}, {8192*i}\ns_waitcnt lgkmcnt({4-2*i})")
        a(f"buffer_store_dwordx4 {vr(vG+4*i,4)}, v{vO16}, {sr(sOE,4)}, s{sA} offen{ST}")
    a(f"s_cmp_lg_u32 s{sWV}, 0\ns_cbranch_scc1 K_E4")
    for i in range(6, 8):
        a(f"ds_read_b64 {vr(vG+2*i,2)}, v{vEA1+i} offset:{EIN}")
    a(f"s_mov_b32 s{sA}, {8192*3}\ns_waitcnt lgkmcnt(0)")
    a(f"buffer_store_dwordx4 {vr(vG+12,4)}, v{vO16}, {sr(sOE,4)}, s{sA} offen{ST}")
    a("K_E4:")
    loop_consts(a)
    a(f"v_lshlrev_b32 v{vT0}, 13, v{vL}\ns_lshl_b32 s{sA}, s{sWV}, 3\ns_mov_b32 s{sB}, 4096")
    a("s_waitcnt vmcnt(0)\ns_barrier")
    stamp()
    a(f"s_lshl_b64 exec, 0xff, s{sA}")
    for i in range(4):
        so = "0" if i < 2 else f"s{sB}"
        a(f"buffer_store_dwordx2 {vr(vGR+2*i,2)}, v{vT0}, {sr(sTO,4)}, {so} offen offset:{2048*(i&1)} sc1")
    a("s_mov_b64 exec, -1")
    vW3T = 88
    a(f"v_and_b32 v{vT2}, 31, v{vL}\nv_lshlrev_b32 v{vT2}, 1, v{vT2}\nv_add_u32 v{vT2}, {W3I}, v{vT2}")
    for m in range(2):
        for t in range(4):
            a(f"ds_read_u16 v{vW3T+4*m+t}, v{vT2} offset:{128*t+64*m}")
    a(f"s_cmp_ge_u32 s{sWV}, 4\ns_cselect_b32 s{sA}, 0, {W4I-W2I}\ns_add_u32 s{sA}, s{sA}, {rel(W2I)}")
    node_gemm(a, f"s{sA}")
    for i in range(8):
        a(f"v_lshlrev_b32 v{vW3T+i}, 16, v{vW3T+i}\nv_mul_f32 v{vW3T+i}, {NEG_L2E}, v{vW3T+i}")
    for i in range(4):
        a(f"v_cvt_pk_bf16_f32 v{vW3+i}, v{vW3T+2*i}, v{vW3T+2*i+1}")
    a("s_mov_b32 exec_lo, 0")
    for i in range(4):
        a(f"v_lshlrev_b32 v{vT1}, 16, v{vW3+i}\nv_and_b32 v{vT2}, 0xffff0000, v{vW3+i}")
        a(f"v_sub_f32 v{vT1}, v{vW3T+2*i}, v{vT1}\nv_sub_f32 v{vT2}, v{vW3T+2*i+1}, v{vT2}")
        a(f"v_cvt_pk_bf16_f32 v{vW3+i}, v{vT1}, v{vT2}")
    a("s_mov_b32 exec_lo, -1")
    a(f"s_cmp_ge_u32 s{sWV}, 4\ns_cbranch_scc1 K_QW")
    for i in range(16):
        a(f"v_mul_f32 v{vU+i}, {NEG_L2E}, v{vX+i}")
    a("s_branch K_ROUND\nK_QW:")
    q_store(a)
    vTB, vW, vCA, vAW, vAE, vC = 8, 20, 40, 76, 80, 84
    vI16, vWB, vN16, vI8, vTA = 56, 57, 58, 59, 60
    a("K_ROUND:")
    pos_consts(a)
    a(f"v_and_b32 v{vI16}, 7, v0\nv_lshlrev_b32 v{vI16}, 4, v{vI16}\nv_sub_u32 v{vN16}, 0, v{vI16}")
    a(f"v_lshrrev_b32 v{vT1}, 3, v0\nv_lshlrev_b32 v{vTA}, 5, v{vT1}\nv_mul_u32_u24 v{vWB}, {4*CSTR*4}, v{vT1}\nv_add3_u32 v{vWB}, v{vWB}, s{sRND}, v{vI16}")
    a(f"v_lshlrev_b32 v{vT1}, 2, v{vT1}\nv_subrev_u32 v{vT1}, s{sG0}, v{vT1}")
    for q in range(4):
        a(f"v_cmp_gt_u32 {sr(sMK+8*q+2,2)}, s{sGG}, v{vT1}\nv_add_u32 v{vT1}, 1, v{vT1}")
    a(f"v_lshrrev_b32 v{vI8}, 1, v{vI16}\nv_mov_b32 v{vLEN}, 0\ns_mov_b32 s{sC}, 0xc003c003\ns_mov_b32 s{sA}, 0")
    stamp()
    a("K_POLL:")
    a(f"buffer_load_dwordx4 {vr(vTB,4)}, v{vTA}, {sr(sT,4)}, 0 offen sc1")
    a(f"buffer_load_dwordx4 {vr(vTB+4,4)}, v{vTA}, {sr(sT,4)}, 0 offen offset:16 sc1")
    a(f"s_add_u32 s{sA}, s{sA}, 1\ns_cmp_gt_u32 s{sA}, {1 << 20}\ns_cbranch_scc1 K_END")
    a("s_waitcnt vmcnt(0)")
    a(f"v_or3_b32 v{vT1}, v{vTB}, v{vTB+2}, v{vTB+4}\nv_or_b32 v{vT1}, v{vT1}, v{vTB+6}\nv_and_b32 v{vT1}, s{sC}, v{vT1}")
    for q in range(4):
        a(f"v_xor_b32 v{vTB+2*q+1}, s{sTAG}, v{vTB+2*q+1}")
    a(f"v_or3_b32 v{vT1}, v{vT1}, v{vTB+1}, v{vTB+3}\nv_or3_b32 v{vT1}, v{vT1}, v{vTB+5}, v{vTB+7}")
    a(f"v_cmp_ne_u32 vcc, 0, v{vT1}\ns_cbranch_vccnz K_POLL")
    stamp()
    for q in range(4):
        a(f"v_and_b32 v{vAW+q}, 0xffff, v{vTB+2*q}\nv_lshrrev_b32 v{vC+q}, 16, v{vTB+2*q}")
        a(f"v_add_u32 v{vAW+q}, v{vAW+q}, v{vWB}\nv_subrev_u32 v{vC+q}, s{sRND}, v{vC+q}")
        a(f"v_max_i32 v{vLEN}, v{vLEN}, v{vC+q}\nv_cndmask_b32 v{vC+q}, 0, v{vC+q}, {sr(sMK+8*q+2,2)}")
        a(f"v_cmp_lt_i32 {sr(sMK+8*q,2)}, v{vI16}, v{vC+q}")
        a(f"s_mov_b32 s{sA}, {q*CSTR*4}\nv_lshl_add_u32 v{vAE+q}, v{vAW+q}, 1, v{vN16}")
        a(f"s_or_b64 exec, {sr(sMK+8*q,2)}, 1")
        a(f"buffer_load_dwordx4 {vr(vW+4*q,4)}, v{vAW+q}, {sr(sW0,4)}, s{sA} offen{LD}")
        a("s_mov_b64 exec, -1")
    a(f"v_cmp_lt_i32 vcc, 0x80, v{vLEN}\ns_cbranch_vccz K_NOMORE")
    a(f"v_mov_b32 v{vT1}, 0\nds_write_b32 v{vT1}, v{vT1} offset:{FLG_MORE}\nK_NOMORE:")
    for q in range(4):
        a(f"v_sub_u32 v{vTB+q}, v{vC+q}, v{vI8}\nv_sub_u32 v{vC+q}, v{vC+q}, v{vI16}")
        for r in range(1, 4):
            a(f"v_cmp_lt_i32 {sr(sMK+8*q+2*r,2)}, {4*r}, v{vC+q}")
    def e_dma(q, hf):
        a(f"v_cmp_lt_i32 vcc, {64*hf}, v{vTB+q}")
        a(f"s_add_u32 m0, s{sB}, {EAI + 2048*q + 1024*hf}\ns_mov_b32 s{sA}, {q*CSTR*8 + 128*hf}")
        a("s_or_b64 exec, vcc, 1")
        a(f"buffer_load_dwordx4 v{vAE+q}, {sr(sEA,4)}, s{sA} offen{LD} lds")
    eo = opt.get("eorder", 1)
    a(f"v_mov_b32 v{vT0}, 4\ns_movk_i32 s{sC}, 0x3fff")
    if eo == 0:
        for q in range(4):
            e_dma(q, 0); e_dma(q, 1); a("s_mov_b64 exec, -1")
    for q in range(4):
        a(f"s_waitcnt vmcnt({(11-q) if eo == 0 else (3 if eo == 1 else 3-q)})")
        if q == 0:
            stamp()
        for r in range(4):
            k = 4 * q + r
            a(f"v_lshrrev_b32 v{vCA+k}, 12, v{vW+k}\nv_and_b32 v{vCA+k}, 0xfc, v{vCA+k}")
        for r in range(4):
            k = 4 * q + r
            a(f"s_mov_b64 exec, {sr(sMK+2*k,2)}\nds_add_rtn_u32 v{vCA+k}, v{vCA+k}, v{vT0} offset:{CNT}")
        a("s_mov_b64 exec, -1")
        if eo == 1:
            e_dma(q, 0); a("s_mov_b64 exec, -1")
    if eo == 2:
        for q in range(4):
            e_dma(q, 0); a("s_mov_b64 exec, -1")
    for k in range(16):
        a(f"v_and_or_b32 v{vW+k}, v{vW+k}, s{sC}, v{vPOS+k}")
    for q in range(4):
        a(f"s_waitcnt lgkmcnt({min(15, 12)})")
        for k in range(4 * q, 4 * q + 4):
            a(f"s_mov_b64 exec, {sr(sMK+2*k,2)}\nds_write_b32 v{vCA+k}, v{vW+k}")
    a("s_mov_b64 exec, -1")
    if eo:
        for q in range(4):
            e_dma(q, 1); a("s_mov_b64 exec, -1")
    a(f"v_lshlrev_b32 v{vT4}, 2, v{vL}\nv_mul_u32_u24 v{vT3}, {CAPB}, v{vL}\nv_add_u32 v{vT3}, {LIST}, v{vT3}")
    a("s_waitcnt lgkmcnt(0)\ns_barrier")
    stamp()
    vK, vNP, vSC2 = 8, 9, 10
    a(f"ds_read_b32 v{vK}, v{vT4} offset:{CNT}")
    a(f"v_cmp_gt_u32 vcc, {NPB}, v{vL}\ns_mul_i32 s{sA}, s{sWV}, {4*L}\ns_waitcnt lgkmcnt(0)")
    a(f"v_sub_u32 v{vK}, v{vK}, v{vT3}\nv_cndmask_b32 v{vK}, 0, v{vK}, vcc")
    a(f"v_add_u32 v{vNP}, {4*(L-1)}, v{vK}\nv_mul_u32_u24 v{vNP}, 4370, v{vNP}\nv_lshrrev_b32 v{vNP}, 18, v{vNP}")
    a(f"v_mov_b32 v{vSC2}, v{vNP}\nv_cmp_lt_u32 vcc, {CAPB}, v{vK}")
    wave_scan(a, vSC2)
    a(f"v_subrev_u32 v{vK}, s{sA}, v{vK}\nv_add_u32 v{vT3}, s{sA}, v{vT3}")
    a(f"v_readlane_b32 s{sB}, v{vSC2}, 63")
    a(f"v_min_i32 v{vK}, {4*L}, v{vK}\nv_lshl_or_b32 v{vT3}, v{vL}, 24, v{vT3}\nv_lshl_or_b32 v{vT3}, v{vK}, 14, v{vT3}")
    a("s_cbranch_vccnz K_RETRY")
    a(f"s_cmp_gt_u32 s{sB}, 256\ns_cbranch_scc1 K_RETRY")
    a(f"v_sub_u32 v{vT0}, v{vSC2}, v{vNP}\nv_cmp_lt_u32 vcc, s{sWV}, v{vNP}")
    a(f"v_add_lshl_u32 v{vT2}, v{vT0}, s{sWV}, 2\nv_lshl_or_b32 v{vT0}, v{vSC2}, 16, v{vT0}")
    a(f"s_mov_b64 exec, vcc\nds_write_b32 v{vT2}, v{vT3} offset:{PTAB}\ns_mov_b64 exec, -1")
    a(f"v_lshrrev_b32 v{vT2}, 5, v{vOA}\nv_and_b32 v{vT2}, 0xfc, v{vT2}\nds_bpermute_b32 v{vPBE}, v{vT2}, v{vT0}")
    a(f"s_lshl_b32 s{sA}, s{sWV}, 7")
    a(f"v_and_b32 v{vT2}, 31, v{vL}\nv_lshl_add_u32 v{vT2}, v{vT2}, 2, s{sA}")
    a(f"v_lshrrev_b32 v{vT3}, 3, v{vL}\nv_lshl_add_u32 v{vT3}, v{vT3}, 4, s{sA}")
    a("s_waitcnt lgkmcnt(0)\ns_barrier")
    stamp()
    a(f"ds_read_b128 {vr(vPA,4)}, v{vT3} offset:{PTAB}\nds_read_b32 v{vT4}, v{vT2} offset:{PTAB}")
    a(f"v_lshrrev_b32 v{vT1}, 5, v{vL}\nv_lshlrev_b32 v{vT1}, 4, v{vT1}\nv_add_u32 v{vT1}, {QB}, v{vT1}")
    a(f"s_movk_i32 s{sA}, {QSTR}\ns_waitcnt lgkmcnt(1)")
    for j in range(4):
        a(f"v_and_b32 v{vPA+j}, 0xffff, v{vPA+j}\nds_read_u16 v{vIDX+2*j}, v{vPA+j}")
    a("s_waitcnt lgkmcnt(4)")
    a(f"v_and_b32 v{vPO}, 0xffff, v{vT4}\nv_lshrrev_b32 v{vT2}, 24, v{vT4}\nv_mad_u32_u24 v{vT1}, v{vT2}, s{sA}, v{vT1}")
    a(f"ds_read_u16 v{vEAD}, v{vPO} offset:2\nv_bfe_u32 v{vLEN}, v{vT4}, 16, 8")
    a("s_waitcnt lgkmcnt(1)")
    dma(a, 0)
    idx_reads(a, 1)
    for k in range(8):
        a(f"ds_read_b128 {vr(vQ+4*k,4)}, v{vT1} offset:{32*k}")
    for t in range(1, L):
        a(f"v_cmp_lt_u32 {mask(t)}, {t}, v{vLEN}")
    a("s_waitcnt vmcnt(4) lgkmcnt(0)\ns_barrier")
    stamp()
    dma(a, 1)
    a(f"ds_read_b64 {vr(vEV,2)}, v{vEAD} offset:{EAI}")
    idx_reads(a, 2)
    a(f"ds_read_u16 v{vEAD}, v{vPO} offset:6")
    a(f"v_cndmask_b32 v{vPBE}, 0, v{vPBE}, {sr(sVAL,2)}\nv_mov_b32 v{vCHK}, 0\ns_nop 0")
    a(f"v_readfirstlane_b32 s{sKB}, v{vPBE}\nv_readlane_b32 s{sA}, v{vPBE}, 11\nv_readlane_b32 s{sB}, v{vPBE}, 12")
    a(f"s_bfe_u32 s{sKB}, s{sKB}, 0xb0005\ns_min_u32 s{sKB}, s{sKB}, 4\ns_max_u32 s{sA}, s{sA}, s{sB}\ns_lshr_b32 s{sA}, s{sA}, 16")
    a(f"s_lshl_b32 s{sB}, s{sKB}, 5\ns_add_u32 s{sB}, s{sB}, 128\ns_cmp_gt_u32 s{sA}, s{sB}")
    a(f"s_cselect_b32 s{sNP}, 2, 1\ns_cselect_b32 s{sKB}, 0, s{sKB}")
    s_lut_reads(a)
    tr_consts(a)
    a(f"s_cmp_lg_u32 s{sSAFE}, 0\ns_cbranch_scc1 K_SAFE")
    a("s_waitcnt vmcnt(4)")
    stamp()
    x_reads(a, 0, 0)
    x_reads(a, 0, 1)
    a("s_waitcnt lgkmcnt(2)")
    for e in mfma_group(0, 0):
        a(e)
    a("s_nop 7")
    a(f"s_cmp_ge_u32 s{sWV}, 4\ns_cbranch_scc1 K_MAINB")
    main_loop(a, "A")
    a("s_branch K_FLUSHED\nK_MAINB:")
    main_loop(a, "B")
    a("K_FLUSHED:")
    a(f"v_cmp_ngt_f32 vcc, {f32bits(2.0**90):#x}, v{vCHK}\ns_cbranch_vccz K_JOIN")
    a(f"v_mov_b32 v{vT1}, 0\nds_write_b32 v{vT1}, v{vT1} offset:{FLG_NUM}")
    a("K_JOIN:")
    stamp()
    a(f"v_mov_b32 v{vT1}, 0\ns_waitcnt lgkmcnt(0)\ns_barrier")
    vFL = 36
    a(f"ds_read_b64 {vr(vFL,2)}, v{vT1} offset:{FLG_MORE}")
    a(f"s_cmp_ge_u32 s{sWV}, 4\ns_cbranch_scc1 K_NEXT")
    vR, vAG, vBO = 40, 8, 24
    a("K_TAIL:")
    for k in range(4):
        for m in range(2):
            for h in range(2):
                for u in range(2):
                    d = vR + 16 * k + 4 * (2 * m + h) + 2 * u
                    a(f"ds_read_b64_tr_b16 {vr(d,2)}, v{vTR + 2*(m^u) + h} offset:{4096*k + 512*u}")
        if k == 1:
            a("s_waitcnt lgkmcnt(8)")
            a(f"v_readfirstlane_b32 s{sB}, v{vFL+1}")
        if k >= 1:
            if k > 1:
                a("s_waitcnt lgkmcnt(8)")
            for t in range(4):
                c = "0" if k == 1 else vr(vAG + 4 * t, 4)
                a(f"v_mfma_f32_16x16x32_bf16 {vr(vAG+4*t,4)}, {vr(vR+16*(k-1)+4*t,4)}, {vr(vS+4*(k-1),4)}, {c}")
    a("s_waitcnt lgkmcnt(0)")
    for t in range(4):
        a(f"v_mfma_f32_16x16x32_bf16 {vr(vAG+4*t,4)}, {vr(vR+48+4*t,4)}, {vr(vS+12,4)}, {vr(vAG+4*t,4)}")
    a(f"s_cmp_eq_u32 s{sB}, 0\ns_cbranch_scc1 K_NEXT\ns_nop 2")
    for i in range(8):
        a(f"v_cvt_pk_bf16_f32 v{vBO+i}, v{vAG+2*i}, v{vAG+2*i+1}")
    a("s_nop 1")
    small_mfma(a, vU, vQ, vBO, cinit=True)
    a(f"s_cmp_eq_u32 s{sNP}, 2\ns_cbranch_scc1 K_TAIL2")
    a("K_NEXT:\ns_waitcnt lgkmcnt(0)")
    a(f"v_readfirstlane_b32 s{sA}, v{vFL}\nv_readfirstlane_b32 s{sB}, v{vFL+1}")
    a(f"s_add_u32 s{sC}, s{sG0}, s{sGG}")
    a(f"s_cmp_eq_u32 s{sB}, 0\ns_cbranch_scc1 K_TOSAFE")
    a(f"s_mov_b32 s{sG0}, s{sC}\ns_cmp_lt_u32 s{sC}, 256\ns_cbranch_scc1 K_AGAIN")
    a(f"s_mov_b32 s{sG0}, 0\ns_add_u32 s{sRND}, s{sRND}, 128\ns_cmp_eq_u32 s{sA}, 0\ns_cbranch_scc1 K_AGAIN")
    a(f"s_cmp_ge_u32 s{sWV}, 4\ns_cbranch_scc1 K_EPOCH")
    vZ = 40
    a(f"v_mov_b32 v{vT1}, {NEG_L2E}")
    for mh in range(2):
        for i in range(8 * mh, 8 * mh + 8):
            a(f"v_exp_f32 v{vZ+i}, v{vU+i}")
        for i in range(8 * mh, 8 * mh + 8):
            a(f"v_fma_f32 v{vZ+i}, v{vZ+i}, v{vT1}, v{vT1}")
        for i in range(8 * mh, 8 * mh + 8):
            a(f"v_rcp_f32 v{vZ+i}, v{vZ+i}")
        for i in range(8 * mh, 8 * mh + 8):
            a(f"v_mul_f32 v{vZ+i}, v{vZ+i}, v{vU+i}")
        for i in range(4 * mh, 4 * mh + 4):
            a(f"v_cvt_pk_bf16_f32 v{vBO+i}, v{vZ+2*i}, v{vZ+2*i+1}")
        a(f"s_mov_b64 exec, {sr(sVAL,2)}")
        a(f"buffer_store_dwordx4 {vr(vBO+4*mh,4)}, v{vOA}, {sr(sO,4)}, 0 offen offset:{64*mh}")
    if opt.get("stamp"):
        a("s_mov_b64 exec, -1")
        stamp()
        a("s_waitcnt vmcnt(0)")
        stamp()
        a(f"s_lshl_b32 s{sA}, s2, 2\ns_add_u32 s{sA}, s{sA}, s{sWV}\ns_lshl_b32 s{sA}, s{sA}, 7\ns_add_u32 s{sA}, s{sA}, {WS_DBG + 65536}")
        srd(a, sX, 14, f"s{sA}", 128)
        a(f"v_lshlrev_b32 v2, 2, v{vL}\nbuffer_store_dword v3, v2, {sr(sX,4)}, 0 offen")
        if opt.get("stamp") == 2:
            a(f"s_load_dwordx2 s[4:5], s[0:1], 56\ns_or_b32 s{sA}, s2, s{sWV}\ns_cmp_lg_u32 s{sA}, 100\ns_cbranch_scc1 K_END\ns_waitcnt lgkmcnt(0)")
            srd(a, sX, 4, None, 64)
            a(f"v_readfirstlane_b32 s{sA}, v3\ns_nop 1\nv_subrev_u32 v3, s{sA}, v3\nbuffer_store_dword v3, v2, {sr(sX,4)}, 0 offen")
    a("K_END:\ns_endpgm")
    a(f"K_EPOCH:\ns_cmp_lg_u32 s2, 0\ns_cbranch_scc1 K_END\ns_cmp_lg_u32 s{sWV}, 4\ns_cbranch_scc1 K_END")
    srd(a, sX, 14, WS_EPOCH, 4)
    a(f"v_mov_b32 v{vT2}, s{sTAG}\nv_lshlrev_b32 v{vT1}, 2, v{vL}\nbuffer_store_dword v{vT2}, v{vT1}, {sr(sX,4)}, 0 offen\ns_endpgm")
    a(f"K_TAIL2:\ns_mov_b32 s{sNP}, 1\ns_mov_b32 s{sKB}, 4")
    s_lut_reads(a)
    tr_consts(a)
    a("s_waitcnt lgkmcnt(0)\ns_branch K_TAIL")
    a(f"K_RETRY:\ns_lshr_b32 s{sGG}, s{sGG}, 1\ns_cbranch_scc0 K_END\ns_branch K_AGAIN")
    a(f"K_TOSAFE:\ns_mov_b32 s{sSAFE}, 1")
    a("K_AGAIN:\ns_waitcnt vmcnt(0) lgkmcnt(0)\ns_barrier")
    a(f"s_lshl_b32 s{sB}, s{sWV}, 10")
    w_loads(False)
    a(f"buffer_load_dwordx4 {vr(vXB,4)}, v{vOA}, {sr(sX,4)}, 0 offen")
    a(f"buffer_load_dwordx4 {vr(vXB+4,4)}, v{vOA}, {sr(sX,4)}, 0 offen offset:64")
    lds_init(a)
    a("s_waitcnt vmcnt(0) lgkmcnt(0)\ns_barrier")
    a(f"s_cmp_lt_u32 s{sWV}, 4\ns_cbranch_scc1 K_ROUND")
    node_gemm(a, rel(W2I))
    a("s_nop 7\ns_branch K_QW")
    a("K_SAFE:")
    safe_loop(a)
    a("s_branch K_JOIN")
    return a.text(), kd(name, 256, 102)
```

```python
import sys
from asmlib import *
from common import *
import k1, k2, k3
HDR = open("standalone__mpnn_edge_mlp__graph.s.ref").read().split("; Override launch")[0]
def build(opt):
    if opt.get("fused", 1):
        n = "standalone__mpnn_edge_mlp__graph_kernel"
        t, d = k3.gen_k3(n, opt)
        s = HDR + f"; @launch grid=(256,1,1) block=(512,1,1) lds={k2.K2_LDS}\n"
        return s + '.amdgcn_target "amdgcn-amd-amdhsa--gfx950"\n.text\n' + t + '.section .rodata,"a"\n.p2align 6\n' + d
    n1, n2 = "mpnn_bin_kernel", "standalone__mpnn_edge_mlp__graph_kernel"
    t1, d1 = k1.gen_k1(n1, opt)
    t2, d2 = k2.gen_k2(n2, opt)
    s = HDR
    s += f"; @launch kernel={n1} grid=(256,1,1) block=(512,1,1) lds={k1.K1_LDS}\n"
    s += f"; @launch kernel={n2} grid=(256,1,1) block=(512,1,1) lds={k2.K2_LDS}\n"
    s += '.amdgcn_target "amdgcn-amd-amdhsa--gfx950"\n.text\n' + t1 + t2
    s += '.section .rodata,"a"\n.p2align 6\n' + d1 + ".p2align 6\n" + d2
    return s
if __name__ == "__main__":
    out = sys.argv[1]
    opt = {}
    for kv in sys.argv[2:]:
        k, v = kv.split("=")
        opt[k] = int(v) if v.lstrip("-").isdigit() else v
    open(out, "w").write(build(opt))
```
